```python
import torch

def _softmax(x, axis=-1):
    return torch.softmax(x, dim=axis)
def _gelu(x):
    return torch.nn.functional.gelu(x, approximate="tanh")
def _silu(x):
    return torch.nn.functional.silu(x)
def _sigmoid(x):
    return torch.sigmoid(x)
def _layernorm(x, axis=-1, eps=1e-5):
    m = x.mean(dim=axis, keepdim=True)
    v = x.var(dim=axis, keepdim=True, unbiased=False)
    return (x - m) / torch.sqrt(v + eps)
def _scatter_add(tgt, idx, src, axis=0):
    return tgt.clone().index_add_(axis, idx, src)
def _segment_sum(src, seg, n):
    out = torch.zeros((n,) + src.shape[1:], dtype=src.dtype)
    return out.index_add_(0, seg, src)
def _pad(x, pw):
    flat = tuple(v for pair in reversed(pw) for v in pair)
    return torch.nn.functional.pad(x, flat)

kernel_name = 'standalone__gqa_softmax__near_ridge'

def setup_inputs():

    _w = (lambda a: (lambda t: t.to(torch.bfloat16) if t.is_floating_point() else t)(torch.as_tensor(a)))
    B, Hq, Hkv, Sq, Sk, D = 32, 32, 4, 256, 256, 128
    return {
        "q": _w((lambda *s: torch.randn(*s, dtype=torch.bfloat16) * 0.8)(B, Hq, Sq, D)),
        "k": _w((lambda *s: torch.randn(*s, dtype=torch.bfloat16) * 0.8)(B, Hkv, Sk, D)),
        "v": _w((lambda *s: torch.randn(*s, dtype=torch.bfloat16) * 0.05)(B, Hkv, Sk, D)),
    }

def reference(q, k, v):
    B, Hq, Sq, D = q.shape
    Hkv = k.shape[1]
    rep = Hq // Hkv
    k = (lambda x, n, axis: torch.repeat_interleave(x, n, dim=axis))(k, rep, axis=1)
    v = (lambda x, n, axis: torch.repeat_interleave(x, n, dim=axis))(v, rep, axis=1)
    scale = D ** -0.5
    scores = torch.einsum("bhqd,bhkd->bhqk", q, k) * scale
    p = _softmax(scores, axis=-1)
    return torch.einsum("bhqk,bhkd->bhqd", p, v)
```

```python
def vr(a, n=1):
    return [f"v{i}" for i in range(a, a + n)]
def sr(a, n=1):
    return [f"s{i}" for i in range(a, a + n)]
def V(a, n=1):
    return f"v{a}" if n == 1 else f"v[{a}:{a+n-1}]"
def S(a, n=1):
    return f"s{a}" if n == 1 else f"s[{a}:{a+n-1}]"

class I:
    __slots__ = ("text", "kind", "rd", "wr", "tag", "want", "lgkm", "vm", "nop", "a", "b", "c", "data", "cost")
    def __init__(self, text, kind, rd=(), wr=(), tag=None, want=None, a=(), b=(), c=(), data=()):
        self.text = text; self.kind = kind
        self.rd = set(rd); self.wr = set(wr)
        self.tag = tag; self.want = want
        self.lgkm = None; self.vm = None; self.nop = 0
        self.a = set(a); self.b = set(b); self.c = set(c); self.data = set(data)
    def __repr__(self):
        return self.text

VALU_KINDS = ("valu", "trans", "perm", "rfl")

def _src(x):
    if isinstance(x, str):
        t = x
        core = t.lstrip("-")
        if core.startswith("v") and core[1:].isdigit():
            return t, [core]
        if core.startswith("s") and core[1:].isdigit():
            return t, [core]
        if core in ("vcc", "exec", "m0"):
            return t, [core]
        return t, []
    if isinstance(x, float):
        return repr(x), []
    if isinstance(x, int):
        return (str(x) if -16 <= x <= 64 else hex(x & 0xffffffff)), []
    raise ValueError(x)

def valu(op, d, *srcs, kind="valu", extra_rd=(), extra_wr=()):
    ts = []; rd = []
    for s in srcs:
        t, r = _src(s); ts.append(t); rd += r
    return I(f"{op} {d}, " + ", ".join(ts), kind, rd=rd + list(extra_rd), wr=[d] + list(extra_wr))

def trans(op, d, s):
    return valu(op, d, s, kind="trans")

def salu(op, d, *srcs, scc_w=True, scc_r=False):
    ts = []; rd = []
    for s in srcs:
        t, r = _src(s); ts.append(t); rd += r
    wr = []
    if d is not None:
        wr.append(d)
        txt = f"{op} {d}, " + ", ".join(ts)
    else:
        txt = f"{op} " + ", ".join(ts)
    return I(txt, "salu", rd=rd, wr=wr)

def raw(text, kind="salu", rd=(), wr=()):
    return I(text, kind, rd=rd, wr=wr)

def mfma(d, a, b, c):
    ct = "0" if c is None else V(c, 16)
    cr = [] if c is None else vr(c, 16)
    return I(f"v_mfma_f32_32x32x16_bf16 {V(d,16)}, {V(a,4)}, {V(b,4)}, {ct}", "mfma",
             rd=vr(a, 4) + vr(b, 4) + cr, wr=vr(d, 16), a=vr(a, 4), b=vr(b, 4), c=cr)

def ds_read(d, n, addr, off, tr=False):
    op = {4: "ds_read_b128", 2: "ds_read_b64", 1: "ds_read_b32"}[n]
    if tr: op = "ds_read_b64_tr_b16"
    assert 0 <= off < 65536
    o = f" offset:{off}" if off else ""
    return I(f"{op} {V(d,n)}, v{addr}{o}", "dsr", rd=[f"v{addr}"], wr=vr(d, n))

def ds_write(addr, s, n, off):
    op = {4: "ds_write_b128", 2: "ds_write_b64", 1: "ds_write_b32"}[n]
    o = f" offset:{off}" if off else ""
    return I(f"{op} v{addr}, {V(s,n)}{o}", "dsw", rd=[f"v{addr}"] + vr(s, n), data=vr(s, n))

def buf_load(d, n, voff, srd, soff, off=0, flags="", tag=None):
    op = {4: "buffer_load_dwordx4", 2: "buffer_load_dwordx2", 1: "buffer_load_dword"}[n]
    assert 0 <= off < 4096
    o = f" offset:{off}" if off else ""
    st, sr_ = _src(soff)
    f = (" " + flags) if flags else ""
    return I(f"{op} {V(d,n)}, v{voff}, {S(srd,4)}, {st} offen{o}{f}", "vld",
             rd=[f"v{voff}"] + sr(srd, 4) + sr_, wr=vr(d, n), tag=tag)

def buf_load_lds(voff, srd, soff, off=0, flags="", tag=None):
    o = f" offset:{off}" if off else ""
    st, sr_ = _src(soff)
    f = (" " + flags) if flags else ""
    return I(f"buffer_load_dwordx4 v{voff}, {S(srd,4)}, {st} offen{o}{f} lds", "dma",
             rd=[f"v{voff}", "m0"] + sr(srd, 4) + sr_, tag=tag)

def buf_store(s, n, voff, srd, soff, off=0, flags="", tag=None):
    op = {4: "buffer_store_dwordx4", 2: "buffer_store_dwordx2", 1: "buffer_store_dword"}[n]
    assert 0 <= off < 4096
    o = f" offset:{off}" if off else ""
    st, sr_ = _src(soff)
    f = (" " + flags) if flags else ""
    return I(f"{op} {V(s,n)}, v{voff}, {S(srd,4)}, {st} offen{o}{f}", "vst",
             rd=[f"v{voff}"] + vr(s, n) + sr(srd, 4) + sr_, data=vr(s, n), tag=tag)

def wait_vm(*tags):
    return I("", "waitvm", want=tags)

def label(name):
    return I(name + ":", "label")

def permswap(a, b):
    return I(f"v_permlane32_swap_b32 v{a}, v{b}", "perm", rd=[f"v{a}", f"v{b}"], wr=[f"v{a}", f"v{b}"])

def analyze_waits(trace):
    lq = []
    vq = []
    for ins in trace:
        k = ins.kind
        if k == "label":
            continue
        if k == "fullwait":
            if "lgkmcnt(0)" in ins.text: lq = []
            if "vmcnt(0)" in ins.text: vq = []
            continue
        touch = ins.rd | ins.wr
        need = None
        for idx, w in enumerate(lq):
            if w & touch:
                need = len(lq) - 1 - idx
        if need is not None:
            need = min(need, 15)
            ins.lgkm = need if ins.lgkm is None else min(ins.lgkm, need)
        if ins.lgkm is not None:
            lq = lq[len(lq) - ins.lgkm:] if ins.lgkm else []
        need = None
        for idx, (w, tag) in enumerate(vq):
            if (w & touch) or (k == "waitvm" and tag in ins.want):
                need = len(vq) - 1 - idx
        if need is not None:
            need = min(need, 63)
            ins.vm = need if ins.vm is None else min(ins.vm, need)
        if ins.vm is not None:
            vq = vq[len(vq) - ins.vm:] if ins.vm else []
        if k == "dsr": lq.append(set(ins.wr))
        elif k == "dsw": lq.append(set())
        elif k == "vld": vq.append((set(ins.wr), ins.tag))
        elif k in ("vst", "dma"): vq.append((set(), ins.tag))

def _states_of(ins):
    n = 0
    if ins.kind == "label": return 0
    if ins.lgkm is not None or ins.vm is not None: n += 1
    n += ins.nop
    if ins.kind != "waitvm": n += 1
    if ins.kind == "nop": n += ins.cost - 1
    return n

def _required(p, c):
    need = 0
    pk, ck = p.kind, c.kind
    vw = {r for r in p.wr if r[0] == "v" and r != "vcc"}
    sw = {r for r in p.wr if r[0] == "s" or r == "vcc"}
    if pk in VALU_KINDS:
        if ck == "mfma" and vw & c.rd: need = max(need, 2)
        if ck == "perm" and vw & c.rd: need = max(need, 2)
        if ck == "rfl" and vw & c.rd: need = max(need, 1)
        if pk == "trans" and ck in ("valu", "perm", "rfl") and vw & c.rd: need = max(need, 1)
        if sw:
            if ck in VALU_KINDS and sw & c.rd: need = max(need, 2)
            if ck in ("vld", "vst", "dma") and sw & c.rd: need = max(need, 5)
            if ck == "salu" and sw & c.rd: need = max(need, 1)
    if pk == "mfma":
        if ck == "mfma":
            if p.wr & (c.a | c.b): need = max(need, 12)
            if p.wr & c.c and p.wr != c.c: need = max(need, 10)
            if p.wr & c.wr and p.wr != c.c: need = max(need, 10)
        elif ck in VALU_KINDS or ck in ("dsr", "dsw", "vld", "vst", "dma"):
            if p.wr & (c.rd | c.wr): need = max(need, 12)
        if ck in VALU_KINDS and p.c & c.wr: need = max(need, 7)
    if pk == "salu" and "m0" in p.wr and ck == "dma": need = max(need, 1)
    if pk == "vst" and len(p.data) >= 3:
        if ck in VALU_KINDS and p.data & c.wr: need = max(need, 2)
        elif p.data & c.wr: need = max(need, 1)
    return need

def analyze_hazards(trace, horizon=24):
    changed = True
    while changed:
        changed = False
        live = [t for t in trace if t.kind != "label"]
        for i, c in enumerate(live):
            if c.kind == "waitvm": continue
            dist = (1 if (c.lgkm is not None or c.vm is not None) else 0) + c.nop
            j = i - 1
            while j >= 0 and dist < horizon:
                p = live[j]
                req = _required(p, c)
                if req > dist:
                    c.nop += req - dist
                    dist = req
                    changed = True
                dist += _states_of(p)
                j -= 1

def emit(prog):
    out = []
    for ins in prog:
        if ins.kind == "label":
            out.append(ins.text); continue
        n = ins.nop
        while n > 0:
            k = min(n, 16)
            out.append(f"    s_nop {k-1}")
            n -= k
        if ins.lgkm is not None or ins.vm is not None:
            w = []
            if ins.vm is not None: w.append(f"vmcnt({ins.vm})")
            if ins.lgkm is not None: w.append(f"lgkmcnt({ins.lgkm})")
            out.append("    s_waitcnt " + " ".join(w))
        if ins.kind != "waitvm":
            out.append("    " + ins.text)
    return "\n".join(out)
```

```python
import sys, struct, math
from asmlib import *

opt = dict(qf="", kvf="", of="", D=6, prio=0, stamp=0)
for a in sys.argv[1:]:
    k, v = a.split("=")
    opt[k] = int(v) if v.lstrip("-").isdigit() else v.replace("+", " ")
QF, KVF, OF, D = opt["qf"], opt["kvf"], opt["of"], opt["D"]

def fbits(x): return struct.unpack("<I", struct.pack("<f", x))[0]

vT0, vK, vV, vFr, vRw, vG, vMC, vL0, vL1, vLI, vT1, vT2, vT3 = 0, 1, 2, 6, 7, 8, 9, 10, 11, 12, 13, 14, 15
FR, QC, QR, T, P, SS, O = 16, 48, 80, 112, 144, 160, 192
sQ, sK, sV, sO = 8, 12, 16, 20
sC, sThr, sTile, sQoff, sOoff, sBad, sWave, sBase, sKV = 28, 29, 30, 31, 32, 33, 34, 36, 37
frA = [vFr, vT0, vT1, vT2]
rwA = [vRw, vRw, vT3, vT3]
QBYTES, KBYTES = 64 << 20, 8 << 20
LDS_V, LDS_SCR = 65536, 131072

def v(n): return f"v{n}"
def s(n): return f"s{n}"

def kfrag(buf, kt, st, addr=vK):
    return [ds_read(FR + 4 * buf, 4, addr, kt * 8192 + (st >> 2) * 4096 + (st & 3) * 256)]
def vfrag(buf, kt, t, u, addr=vV):
    o = kt * 8192 + u * 4096
    return [ds_read(FR + 4 * buf, 2, addr + t, o, tr=True), ds_read(FR + 4 * buf + 2, 2, addr + t, o + 2048, tr=True)]

def qk_mfma(sb, st, buf):
    return mfma(SS + 16 * sb, FR + 4 * buf, QC + 4 * st, None if st == 0 else SS + 16 * sb)
def pv_mfma(pb, t, u, buf, first):
    return mfma(O + 16 * t, FR + 4 * buf, P + 8 * pb + 4 * u, None if (first and u == 0) else O + 16 * t)

def softmax_stream(kt, sb, pb, first):
    b = SS + 16 * sb
    out = []
    for p in range(8 + 2):
        if p < 8:
            out.append(valu("v_fma_f32", v(b + 2 * p), v(b + 2 * p), s(sC), "-" + v(vMC)))
            out.append(valu("v_fma_f32", v(b + 2 * p + 1), v(b + 2 * p + 1), s(sC), "-" + v(vMC)))
        if 1 <= p < 9:
            q = p - 1
            out.append(trans("v_exp_f32", v(b + 2 * q), v(b + 2 * q)))
            out.append(trans("v_exp_f32", v(b + 2 * q + 1), v(b + 2 * q + 1)))
        if p >= 2:
            q = p - 2
            if first and q < 2:
                out.append(valu("v_add_f32", v(vL0 + q), v(b + 2 * q), v(b + 2 * q + 1)))
            else:
                out.append(valu("v_add_f32", v(vL0), v(vL0), v(b + 2 * q)))
                out.append(valu("v_add_f32", v(vL1), v(vL1), v(b + 2 * q + 1)))
            out.append(valu("v_cvt_pk_bf16_f32", v(P + 8 * pb + q), v(b + 2 * q), v(b + 2 * q + 1)))
    return out

def max_stream(sb):
    b = SS + 16 * sb
    out = [valu("v_max3_f32", v(vT1), v(b), v(b + 1), v(b + 2))]
    for i in range(3, 15, 2):
        out.append(valu("v_max3_f32", v(vT1), v(vT1), v(b + i), v(b + i + 1)))
    out.append(valu("v_max_f32", v(vT1), v(vT1), v(b + 15)))
    out.append(valu("v_mov_b32", v(vT2), v(vT1)))
    out.append(permswap(vT1, vT2))
    out.append(valu("v_max_f32", v(vT1), v(vT1), v(vT2)))
    return out

def lred_head():
    return [valu("v_add_f32", v(vT2), v(vL0), v(vL1))]
def lred_rest():
    return [valu("v_mov_b32", v(vT3), v(vT2)),
            permswap(vT2, vT3),
            valu("v_add_f32", v(vT2), v(vT2), v(vT3)),
            raw(f"v_cmp_nge_f32 vcc, s{sThr}, v{vT2}", "valu", rd=[s(sThr), v(vT2)], wr=["vcc"]),
            trans("v_rcp_f32", v(vLI), v(vT2))]
def bad_update():
    return [raw("s_cmp_lg_u64 vcc, 0", "salu", rd=["vcc"]),
            raw(f"s_addc_u32 s{sBad}, s{sBad}, s{sBad}", "salu", rd=[s(sBad)], wr=[s(sBad)])]

def pack_stream(t):
    b = O + 16 * t
    out = []
    for p in range(8 + 1):
        if p < 8:
            out.append(valu("v_mul_f32", v(b + 2 * p), v(b + 2 * p), v(vLI)))
            out.append(valu("v_mul_f32", v(b + 2 * p + 1), v(b + 2 * p + 1), v(vLI)))
        if p >= 1:
            q = p - 1
            out.append(valu("v_cvt_pk_bf16_f32", v(T + 8 * t + q), v(b + 2 * q), v(b + 2 * q + 1)))
    return out

def xor_addrs():
    return [valu("v_xor_b32", v(frA[1]), 32, v(vFr)), valu("v_xor_b32", v(frA[2]), 64, v(vFr)),
            valu("v_xor_b32", v(frA[3]), 96, v(vFr)), valu("v_xor_b32", v(vT3), 16, v(vRw))]

def o_writes(half):
    return [ds_write(frA[x], T + 16 * half + 4 * x, 4, 0) for x in range(4)]
def o_reads(half):
    return [ds_read(T + 16 * half + 4 * j, 4, rwA[j], j * 128) for j in range(4)]
def o_stores(half):
    return [buf_store(T + 16 * half + 4 * j, 4, vG, sO, s(sOoff), j * 256 + half * 128, OF) for j in range(4)]
def q_writes(src, half):
    return [ds_write(rwA[j], src + 16 * half + 4 * j, 4, j * 128) for j in range(4)]
def q_reads(half):
    return [ds_read(QC + 16 * half + 4 * x, 4, frA[x], 0) for x in range(4)]
def q_loads(dst, soff):
    return [buf_load(dst + 16 * half + 4 * j, 4, vG, sQ, soff, j * 256 + half * 128, QF)
            for j in range(4) for half in range(2)]

class Cond:
    n = 0
    def __init__(self, body):
        Cond.n += 1
        self.head = [raw(f"s_cmp_eq_u32 s{sTile}, 0", "salu", rd=[s(sTile)]),
                     raw(f"s_cbranch_scc0 L_skip{Cond.n}", "br")]
        self.body = body
        self.tail = [label(f"L_skip{Cond.n}")]

def spread(gaps, stream, g0, g1):
    n = g1 - g0 + 1
    for i, ins in enumerate(stream):
        gaps[g0 + (i * n) // len(stream)].append(ins)

def slot_frag(kt, m):
    kt %= 8
    if m < 8:
        return kfrag(m % 8, (kt + 1) % 8, m)
    mm = m - 8
    return vfrag(m % 8, (kt - 1) % 8, mm >> 1, mm & 1)

def slot_mfma(kt, m):
    if m < 8:
        return qk_mfma((kt + 1) % 2, m, m % 8)
    mm = m - 8
    return pv_mfma((kt - 1) % 2, mm >> 1, mm & 1, m % 8, first=(kt == 1))

def make_step(kt):
    pre = []
    ds = [[] for _ in range(16)]
    va = [[] for _ in range(16)]
    for g in range(16):
        m = g + D
        if g == 16 - D:
            tags = []
            if kt + 2 <= 7: tags.append(f"K{kt+2}")
            tags.append(f"V{kt}")
            ds[g].append(Cond([wait_vm(*tags), raw("s_barrier", "bar")]))
        ds[g] += slot_frag(kt + (m // 16), m % 16)
    sm = softmax_stream(kt, kt % 2, kt % 2, kt == 0)
    if kt == 0:
        pre += [valu("v_mul_f32", v(vMC), s(sC), v(vT1))] + lred_head()
        spread(va, lred_rest(), 0, 2)
        va[3] += bad_update()
        spread(va, sm, 0, 13)
        spread(va, pack_stream(0), 12, 15)
    elif kt == 1:
        va[0] += xor_addrs()
        spread(va, pack_stream(1), 0, 3)
        spread(va, pack_stream(2), 4, 7)
        spread(va, pack_stream(3), 8, 11)
        spread(va, sm, 0, 15)
        spread(ds, o_writes(0), 4, 5)
        spread(ds, o_reads(0), 6, 7)
        spread(ds, o_stores(0), 10, 13)
        spread(ds, o_writes(1), 12, 13)
        spread(ds, o_reads(1), 14, 15)
    elif kt == 2:
        spread(va, sm, 0, 15)
        spread(ds, o_stores(1), 2, 5)
        va[6] += [salu("s_mov_b32", s(sO + 2), QBYTES), salu("s_lshl_b32", s(sOoff), s(sTile), 16),
                  salu("s_add_u32", s(sOoff), s(sOoff), s(sBase))]
    elif kt == 6:
        spread(va, sm, 0, 15)
        spread(ds, q_writes(QR, 0), 0, 1)
        spread(ds, q_reads(0), 4, 5)
        spread(ds, q_writes(QR, 1), 6, 7)
        spread(ds, q_reads(1), 8, 9)
        va[9] += [raw(f"s_cmp_ge_u32 s{sTile}, 2", "salu", rd=[s(sTile)]),
                  raw(f"s_cselect_b32 s{sQ+2}, 0, s{sQ+2}", "salu", rd=[s(sQ + 2)], wr=[s(sQ + 2)])]
        spread(ds, q_loads(QR, s(sQoff)), 10, 13)
        va[14] += [salu("s_add_u32", s(sQoff), s(sQoff), 65536)]
    elif kt == 7:
        spread(va, sm, 0, 13)
        spread(va, max_stream(0), 11, 15)
    else:
        spread(va, sm, 0, 15)
    seq = list(pre)
    for g in range(16):
        seq.append(slot_mfma(kt, g))
        seq += ds[g]
        seq += va[g]
    return seq

def flatten(seq, first):
    st, tr = [], []
    for x in seq:
        if isinstance(x, Cond):
            st += x.head + x.body + x.tail
            tr += x.head + (x.body if first else [])
        else:
            st.append(x); tr.append(x)
    return st, tr

pro = []
A = pro.append
A(raw("s_cmp_ge_u32 s2, 256", "salu", rd=["s2"]))
A(raw("s_cbranch_scc1 L_end", "br"))
A(raw("s_load_dwordx4 s[4:7], s[0:1], 0", "smem"))
A(raw("s_load_dwordx4 s[24:27], s[0:1], 16", "smem"))
tA, tB, tC, tD, vKd, vVd, vLane = SS, SS + 1, SS + 2, SS + 3, SS + 4, SS + 5, SS + 6
A(valu("v_lshrrev_b32", v(tA), 6, "v0"))
A(valu("v_and_b32", v(vLane), 63, "v0"))
A(raw(f"v_readfirstlane_b32 s{sWave}, v{tA}", "rfl", rd=[v(tA)], wr=[s(sWave)]))
A(salu("s_lshr_b32", "s38", "s2", 4))
A(salu("s_lshl_b32", "s38", "s38", 3))
A(salu("s_and_b32", "s39", "s2", 7))
A(salu("s_add_u32", "s38", "s38", "s39"))
A(salu("s_lshr_b32", "s39", "s2", 3))
A(salu("s_and_b32", "s39", "s39", 1))
A(salu("s_lshl_b32", s(sKV), "s38", 16))
A(salu("s_lshl_b32", "s38", "s38", 1))
A(salu("s_add_u32", "s38", "s38", "s39"))
A(salu("s_lshl_b32", s(sBase), "s38", 18))
A(salu("s_lshl_b32", "s39", s(sWave), 13))
A(salu("s_add_u32", s(sBase), s(sBase), "s39"))
A(valu("v_lshrrev_b32", v(tA), 3, v(vLane)))
A(valu("v_and_b32", v(tB), 7, v(vLane)))
A(valu("v_lshlrev_b32", v(vG), 10, v(tA)))
A(valu("v_lshl_add_u32", v(vG), v(tB), 4, v(vG)))
A(salu("s_and_b32", "s40", s(sWave), 3))
A(salu("s_lshr_b32", "s41", s(sWave), 2))
A(salu("s_lshr_b32", "s42", "s40", 1))
A(salu("s_lshl_b32", "s40", "s40", 11))
A(salu("s_lshl_b32", "s41", "s41", 7))
A(salu("s_add_u32", "s40", "s40", "s41"))
A(valu("v_and_b32", v(tC), 1, v(tA)))
A(valu("v_xor_b32", v(tC), "s42", v(tC)))
A(valu("v_lshrrev_b32", v(tD), 4, v(vLane)))
A(valu("v_lshl_add_u32", v(tC), v(tD), 1, v(tC)))
A(valu("v_lshlrev_b32", v(vKd), 8, v(tB)))
A(valu("v_lshl_add_u32", v(vKd), v(tC), 4, v(vKd)))
A(valu("v_add_u32", v(vKd), "s40", v(vKd)))
A(valu("v_bfe_u32", v(tC), v(vLane), 2, 2))
A(valu("v_xor_b32", v(tC), v(tC), v(tD)))
A(valu("v_lshlrev_b32", v(vVd), 8, v(tD)))
A(valu("v_lshl_add_u32", v(vVd), v(tC), 6, v(vVd)))
A(valu("v_and_b32", v(tC), 3, v(vLane)))
A(valu("v_lshl_add_u32", v(vVd), v(tC), 4, v(vVd)))
A(salu("s_lshl_b32", "s41", s(sWave), 10))
A(valu("v_add_u32", v(vVd), "s41", v(vVd)))
A(raw("s_waitcnt lgkmcnt(0)", "fullwait"))
for srd, lo, nb in ((sQ, 4, QBYTES), (sK, 6, KBYTES), (sV, 24, KBYTES), (sO, 26, 0)):
    A(salu("s_mov_b32", s(srd), s(lo)))
    A(salu("s_and_b32", s(srd + 1), s(lo + 1), 0xffff))
    A(salu("s_mov_b32", s(srd + 2), nb))
    A(salu("s_mov_b32", s(srd + 3), 0x20000))
pro += q_loads(T, s(sBase))
order = ["K0", "K1", "K2", "V0", "K3", "V1", "K4", "V2", "K5", "V3", "K6", "V4", "K7", "V5", "V6", "V7"]
for tag in order:
    kt = int(tag[1]); isv = tag[0] == "V"
    A(salu("s_add_u32", "m0", "s41", kt * 8192 + (LDS_V if isv else 0)))
    A(salu("s_add_u32", "s42", s(sKV), kt * 8192))
    A(buf_load_lds(vVd if isv else vKd, sV if isv else sK, "s42", 0, KVF, tag=tag))
A(salu("s_add_u32", s(sQoff), s(sBase), 65536))
pro += q_loads(QR, s(sQoff))
A(salu("s_add_u32", s(sQoff), s(sQoff), 65536))
A(salu("s_mov_b32", s(sOoff), s(sBase)))
A(salu("s_mov_b32", s(sC), fbits(math.log2(math.e) / math.sqrt(128.0))))
A(salu("s_mov_b32", s(sThr), fbits(2.0 ** 30)))
A(salu("s_mov_b32", s(sTile), 0))
A(salu("s_mov_b32", s(sBad), 0))
A(salu("s_lshl_b32", "s43", s(sWave), 12))
A(salu("s_add_u32", "s43", "s43", LDS_SCR))
A(valu("v_lshlrev_b32", v(tC), 1, v(tA)))
A(valu("v_and_b32", v(tC), 7, v(tC)))
A(valu("v_xor_b32", v(tC), v(tC), v(tB)))
A(valu("v_lshlrev_b32", v(vRw), 9, v(tA)))
A(valu("v_lshl_add_u32", v(vRw), v(tC), 4, v(vRw)))
A(valu("v_add_u32", v(vRw), "s43", v(vRw)))
A(valu("v_and_b32", v(tA), 31, v(vLane)))
A(valu("v_lshrrev_b32", v(tB), 5, v(vLane)))
A(valu("v_bfe_u32", v(tC), v(vLane), 1, 3))
A(valu("v_xor_b32", v(tC), v(tC), v(tB)))
A(valu("v_lshlrev_b32", v(vFr), 7, v(tA)))
A(valu("v_lshl_add_u32", v(vFr), v(tC), 4, v(vFr)))
A(valu("v_add_u32", v(vFr), "s43", v(vFr)))
A(valu("v_lshrrev_b32", v(tC), 4, v(tA)))
A(valu("v_xor_b32", v(tC), v(tC), v(tB)))
A(valu("v_and_b32", v(tD), 7, v(vLane)))
A(valu("v_lshl_add_u32", v(tC), v(tC), 3, v(tD)))
A(valu("v_lshrrev_b32", v(tD), 3, v(tA)))
A(valu("v_lshlrev_b32", v(vK), 10, v(tD)))
A(valu("v_lshl_add_u32", v(vK), v(tC), 4, v(vK)))
A(valu("v_bfe_u32", v(tC), v(vLane), 2, 2))
A(valu("v_lshl_add_u32", v(tD), v(tB), 2, v(tC)))
A(valu("v_lshlrev_b32", v(vV), 8, v(tD)))
A(valu("v_lshl_add_u32", v(vV), v(tC), 6, v(vV)))
A(valu("v_bfe_u32", v(tC), v(vLane), 4, 1))
A(valu("v_lshl_add_u32", v(vV), v(tC), 5, v(vV)))
A(valu("v_and_b32", v(tC), 1, v(vLane)))
A(valu("v_lshl_add_u32", v(vV), v(tC), 4, v(vV)))
A(valu("v_bfe_u32", v(tC), v(vLane), 1, 1))
A(valu("v_lshl_add_u32", v(vV), v(tC), 3, v(vV)))
A(valu("v_add_u32", v(vV), LDS_V, v(vV)))
for t in range(1, 4):
    A(valu("v_xor_b32", v(vV + t), t * 64, v(vV)))
pro += xor_addrs()
if opt["prio"]:
    A(raw(f"s_cmp_ge_u32 s{sWave}, 4", "salu", rd=[s(sWave)]))
    A(raw("s_cbranch_scc0 L_noprio", "br"))
    A(raw("s_setprio 1", "salu"))
    A(label("L_noprio"))
pro += q_writes(T, 0) + q_reads(0) + q_writes(T, 1) + q_reads(1)
A(wait_vm("K0", "K1"))
A(raw("s_barrier", "bar"))
for st in range(8):
    pro += kfrag(st, 0, st)
for st in range(8):
    A(qk_mfma(0, st, st))
    if st < D:
        pro += slot_frag(0, st)
pro += max_stream(0)

steps = []
for kt in range(8):
    steps += make_step(kt)
loop_ctl = [salu("s_add_u32", s(sTile), s(sTile), 1),
            raw(f"s_cmp_lt_u32 s{sTile}, 4", "salu", rd=[s(sTile)]),
            raw("s_cbranch_scc1 L_loop", "br")]
body_st, body_tr0 = flatten(steps, True)
_, body_tr = flatten(steps, False)
body_st = [label("L_loop")] + body_st + loop_ctl
body_tr0 += loop_ctl
body_tr += loop_ctl

tail = []
for m in range(8, 16):
    tail += vfrag(m % 8, 7, (m - 8) >> 1, (m - 8) & 1)
tail += lred_head() + lred_rest() + bad_update() + xor_addrs()
for m in range(8, 16):
    tail.append(pv_mfma(1, (m - 8) >> 1, (m - 8) & 1, m % 8, False))
tail += pack_stream(0) + pack_stream(1) + o_writes(0) + o_reads(0) + pack_stream(2) + pack_stream(3)
tail += o_stores(0) + o_writes(1) + o_reads(1) + o_stores(1)
tail += [salu("s_and_b32", s(sBad), s(sBad), 15), raw("s_cbranch_scc1 L_slow", "br"), label("L_end"), raw("s_endpgm", "br")]

vD, vKa, vVa, vM = T, T + 1, T + 2, T + 6
slow_pre = [label("L_slow"), raw("s_waitcnt vmcnt(0) lgkmcnt(0)", "fullwait"),
            salu("s_mov_b32", s(sQ + 2), QBYTES),
            raw(f"v_mbcnt_lo_u32_b32 v{vD}, -1, 0", "valu", wr=[v(vD)]),
            raw(f"v_mbcnt_hi_u32_b32 v{vD}, -1, v{vD}", "valu", rd=[v(vD)], wr=[v(vD)]),
            valu("v_lshrrev_b32", v(vM), 5, v(vD)),
            valu("v_and_b32", v(vD), 31, v(vD)),
            valu("v_lshlrev_b32", v(vD), 8, v(vD)),
            valu("v_lshl_add_u32", v(vD), v(vM), 4, v(vD)),
            salu("s_mov_b32", "s40", s(sBase)),
            salu("s_mov_b32", "s41", 8)]
st_head = [label("L_slow_tile"),
           raw(f"s_and_b32 s42, s{sBad}, s41", "salu", rd=[s(sBad), "s41"], wr=["s42"]),
           raw("s_cbranch_scc0 L_slow_next", "br")]
st_a = [buf_load(QC + 4 * st, 4, vD, sQ, "s40", st * 32) for st in range(8)]
st_a += [valu("v_mov_b32", v(vM), 0xff800000), valu("v_mov_b32", v(vKa), v(vK)), salu("s_mov_b32", "s43", 0)]
p1 = [label("L_slow_p1")]
for st in range(8): p1 += kfrag(st, 0, st, vKa)
for st in range(8): p1.append(qk_mfma(0, st, st))
for i in range(0, 16, 2): p1.append(valu("v_max3_f32", v(vM), v(vM), v(SS + i), v(SS + i + 1)))
p1 += [valu("v_add_u32", v(vKa), 8192, v(vKa)), salu("s_add_u32", "s43", "s43", 1),
       raw("s_cmp_lt_u32 s43, 8", "salu", rd=["s43"]), raw("s_cbranch_scc1 L_slow_p1", "br")]
st_b = [valu("v_mov_b32", v(vT2), v(vM)), permswap(vM, vT2), valu("v_max_f32", v(vM), v(vM), v(vT2)),
        valu("v_mul_f32", v(vMC), s(sC), v(vM)),
        valu("v_mov_b32", v(vL0), 0), valu("v_mov_b32", v(vL1), 0), valu("v_mov_b32", v(vKa), v(vK)),
        salu("s_mov_b32", "s43", 0)]
st_b += [valu("v_mov_b32", v(vVa + t), v(vV + t)) for t in range(4)]
st_b += [valu("v_mov_b32", v(O + i), 0) for i in range(64)]
p2 = [label("L_slow_p2")]
for st in range(8): p2 += kfrag(st, 0, st, vKa)
for st in range(8): p2.append(qk_mfma(0, st, st))
for m in range(8): p2 += vfrag(m, 0, m >> 1, m & 1, vVa)
p2 += softmax_stream(0, 0, 0, False)
for m in range(8): p2.append(pv_mfma(0, m >> 1, m & 1, m, False))
p2 += [valu("v_add_u32", v(vKa), 8192, v(vKa))] + [valu("v_add_u32", v(vVa + t), 8192, v(vVa + t)) for t in range(4)]
p2 += [salu("s_add_u32", "s43", "s43", 1), raw("s_cmp_lt_u32 s43, 8", "salu", rd=["s43"]), raw("s_cbranch_scc1 L_slow_p2", "br")]
st_c = lred_head() + lred_rest()[:3] + [trans("v_rcp_f32", v(vLI), v(vT2))]
TS = T + 8
for t in range(4):
    b = O + 16 * t
    for p in range(8):
        st_c.append(valu("v_mul_f32", v(b + 2 * p), v(b + 2 * p), v(vLI)))
        st_c.append(valu("v_mul_f32", v(b + 2 * p + 1), v(b + 2 * p + 1), v(vLI)))
    for p in range(8):
        st_c.append(valu("v_cvt_pk_bf16_f32", v(QR + 8 * t + p), v(b + 2 * p), v(b + 2 * p + 1)))
    for gg in range(2):
        st_c.append(buf_store(QR + 8 * t + 4 * gg, 4, vD, sO, "s40", 64 * t + 32 * gg))
st_next = [label("L_slow_next"), salu("s_add_u32", "s40", "s40", 65536), salu("s_lshr_b32", "s41", "s41", 1),
           raw("s_cbranch_scc1 L_slow_tile", "br"), raw("s_endpgm", "br")]
slow = slow_pre + st_head + st_a + p1 + st_b + p2 + st_c + st_next

main_tr = pro + body_tr0 + body_tr + body_tr + body_tr + tail
one = st_head + st_a + p1 + p1 + p1 + st_b + p2 + p2 + p2 + st_c + st_next
slow_tr = main_tr + slow_pre + one + one
for _ in range(2):
    analyze_waits(slow_tr)
analyze_hazards(slow_tr)
prog = pro + body_st + tail + slow

hdr = """; GQA attention, B32 Hq32 Hkv4 Sq256 Sk256 D128 bf16.  Generated by gen/gen.py (hand-written generator).
; @launch grid=(256,1,1) block=(512,1,1) lds=163840
.amdgcn_target "amdgcn-amd-amdhsa--gfx950"
.text
.globl standalone__gqa_softmax__near_ridge_kernel
.p2align 8
.type standalone__gqa_softmax__near_ridge_kernel,@function
standalone__gqa_softmax__near_ridge_kernel:
"""
ftr = """
.section .rodata,"a"
.p2align 6
.amdhsa_kernel standalone__gqa_softmax__near_ridge_kernel
  .amdhsa_next_free_vgpr 256
  .amdhsa_next_free_sgpr 96
  .amdhsa_accum_offset 256
  .amdhsa_group_segment_fixed_size 0
  .amdhsa_kernarg_size 48
  .amdhsa_user_sgpr_count 2
  .amdhsa_user_sgpr_kernarg_segment_ptr 1
  .amdhsa_system_sgpr_workgroup_id_x 1
.end_amdhsa_kernel
"""
print(hdr + emit(prog) + ftr)
```

```python
import sys, struct, math
from asmlib import *

opt = dict(qf="", kvf="", of="", D=6, prio=0, stamp=0)
for a in sys.argv[1:]:
    k, v = a.split("=")
    opt[k] = int(v) if v.lstrip("-").isdigit() else v.replace("+", " ")
QF, KVF, OF, D = opt["qf"], opt["kvf"], opt["of"], opt["D"]

def fbits(x): return struct.unpack("<I", struct.pack("<f", x))[0]

vT0, vK, vV, vFr, vRw, vG, vMC, vL0, vL1, vLI, vT1, vT2, vT3 = 0, 1, 2, 6, 7, 8, 9, 10, 11, 12, 13, 14, 15
FR, QC, QR, T, P, SS, O = 16, 48, 80, 112, 144, 160, 192
sQ, sK, sV, sO = 8, 12, 16, 20
sC, sThr, sTile, sQoff, sOoff, sBad, sWave, sBase, sKV = 28, 29, 30, 31, 32, 33, 34, 36, 37
frA = [vFr, vT0, vT1, vT2]
rwA = [vRw, vRw, vT3, vT3]
QBYTES, KBYTES = 64 << 20, 8 << 20
LDS_V, LDS_SCR = 65536, 131072

def v(n): return f"v{n}"
def s(n): return f"s{n}"

def kfrag(buf, kt, st, addr=vK):
    return [ds_read(FR + 4 * buf, 4, addr, kt * 8192 + (st >> 2) * 4096 + (st & 3) * 256)]
def vfrag(buf, kt, t, u, addr=vV):
    o = kt * 8192 + u * 4096
    return [ds_read(FR + 4 * buf, 2, addr + t, o, tr=True), ds_read(FR + 4 * buf + 2, 2, addr + t, o + 2048, tr=True)]

def qk_mfma(sb, st, buf):
    return mfma(SS + 16 * sb, FR + 4 * buf, QC + 4 * st, None if st == 0 else SS + 16 * sb)
def pv_mfma(pb, t, u, buf, first):
    return mfma(O + 16 * t, FR + 4 * buf, P + 8 * pb + 4 * u, None if (first and u == 0) else O + 16 * t)

def softmax_stream(kt, sb, pb, first):
    b = SS + 16 * sb
    out = []
    for p in range(8 + 2):
        if p < 8:
            out.append(valu("v_fma_f32", v(b + 2 * p), v(b + 2 * p), s(sC), "-" + v(vMC)))
            out.append(valu("v_fma_f32", v(b + 2 * p + 1), v(b + 2 * p + 1), s(sC), "-" + v(vMC)))
        if 1 <= p < 9:
            q = p - 1
            out.append(trans("v_exp_f32", v(b + 2 * q), v(b + 2 * q)))
            out.append(trans("v_exp_f32", v(b + 2 * q + 1), v(b + 2 * q + 1)))
        if p >= 2:
            q = p - 2
            if first and q < 2:
                out.append(valu("v_add_f32", v(vL0 + q), v(b + 2 * q), v(b + 2 * q + 1)))
            else:
                out.append(valu("v_add_f32", v(vL0), v(vL0), v(b + 2 * q)))
                out.append(valu("v_add_f32", v(vL1), v(vL1), v(b + 2 * q + 1)))
            out.append(valu("v_cvt_pk_bf16_f32", v(P + 8 * pb + q), v(b + 2 * q), v(b + 2 * q + 1)))
    return out

def max_stream(sb):
    b = SS + 16 * sb
    out = [valu("v_max3_f32", v(vT1), v(b), v(b + 1), v(b + 2))]
    for i in range(3, 15, 2):
        out.append(valu("v_max3_f32", v(vT1), v(vT1), v(b + i), v(b + i + 1)))
    out.append(valu("v_max_f32", v(vT1), v(vT1), v(b + 15)))
    out.append(valu("v_mov_b32", v(vT2), v(vT1)))
    out.append(permswap(vT1, vT2))
    out.append(valu("v_max_f32", v(vT1), v(vT1), v(vT2)))
    return out

def lred_head():
    return [valu("v_add_f32", v(vT2), v(vL0), v(vL1))]
def lred_rest():
    return [valu("v_mov_b32", v(vT3), v(vT2)),
            permswap(vT2, vT3),
            valu("v_add_f32", v(vT2), v(vT2), v(vT3)),
            raw(f"v_cmp_nge_f32 vcc, s{sThr}, v{vT2}", "valu", rd=[s(sThr), v(vT2)], wr=["vcc"]),
            trans("v_rcp_f32", v(vLI), v(vT2))]
def bad_update():
    return [raw("s_cmp_lg_u64 vcc, 0", "salu", rd=["vcc"]),
            raw(f"s_addc_u32 s{sBad}, s{sBad}, s{sBad}", "salu", rd=[s(sBad)], wr=[s(sBad)])]

def pack_stream(t):
    b = O + 16 * t
    out = []
    for p in range(8 + 1):
        if p < 8:
            out.append(valu("v_mul_f32", v(b + 2 * p), v(b + 2 * p), v(vLI)))
            out.append(valu("v_mul_f32", v(b + 2 * p + 1), v(b + 2 * p + 1), v(vLI)))
        if p >= 1:
            q = p - 1
            out.append(valu("v_cvt_pk_bf16_f32", v(T + 8 * t + q), v(b + 2 * q), v(b + 2 * q + 1)))
    return out

def xor_addrs():
    return [valu("v_xor_b32", v(frA[1]), 32, v(vFr)), valu("v_xor_b32", v(frA[2]), 64, v(vFr)),
            valu("v_xor_b32", v(frA[3]), 96, v(vFr)), valu("v_xor_b32", v(vT3), 16, v(vRw))]

def o_writes(half):
    return [ds_write(frA[x], T + 16 * half + 4 * x, 4, 0) for x in range(4)]
def o_reads(half):
    return [ds_read(T + 16 * half + 4 * j, 4, rwA[j], j * 128) for j in range(4)]
def o_stores(half):
    return [buf_store(T + 16 * half + 4 * j, 4, vG, sO, s(sOoff), j * 256 + half * 128, OF) for j in range(4)]
def q_writes(src, half):
    return [ds_write(rwA[j], src + 16 * half + 4 * j, 4, j * 128) for j in range(4)]
def q_reads(half):
    return [ds_read(QC + 16 * half + 4 * x, 4, frA[x], 0) for x in range(4)]
def q_loads(dst, soff):
    return [buf_load(dst + 16 * half + 4 * j, 4, vG, sQ, soff, j * 256 + half * 128, QF)
            for j in range(4) for half in range(2)]

class Cond:
    n = 0
    def __init__(self, body):
        Cond.n += 1
        self.head = [raw(f"s_cmp_eq_u32 s{sTile}, 0", "salu", rd=[s(sTile)]),
                     raw(f"s_cbranch_scc0 L_skip{Cond.n}", "br")]
        self.body = body
        self.tail = [label(f"L_skip{Cond.n}")]

def spread(gaps, stream, g0, g1):
    n = g1 - g0 + 1
    for i, ins in enumerate(stream):
        gaps[g0 + (i * n) // len(stream)].append(ins)

def slot_frag(kt, m):
    kt %= 8
    if m < 8:
        return kfrag(m % 8, (kt + 1) % 8, m)
    mm = m - 8
    return vfrag(m % 8, (kt - 1) % 8, mm >> 1, mm & 1)

def slot_mfma(kt, m):
    if m < 8:
        return qk_mfma((kt + 1) % 2, m, m % 8)
    mm = m - 8
    return pv_mfma((kt - 1) % 2, mm >> 1, mm & 1, m % 8, first=(kt == 1))

STAMP = opt["stamp"]
def stamp(reg, real=False):
    return [raw(f"s_mem{'real' if real else ''}time s[{reg}:{reg+1}]", "smem")] if STAMP else []
def make_step(kt):
    pre = []
    if STAMP:
        cur, prev = (60, 62) if kt % 2 == 0 else (62, 60)
        pre += stamp(cur)
        pre += [raw(f"s_lshl_b32 s35, s{sTile}, 3"), raw(f"s_add_u32 m0, s35, {kt}"), raw("s_nop 0"), raw(f"s_movreld_b32 s64, s{prev}")]
    ds = [[] for _ in range(16)]
    va = [[] for _ in range(16)]
    for g in range(16):
        m = g + D
        if g == 16 - D:
            tags = []
            if kt + 2 <= 7: tags.append(f"K{kt+2}")
            tags.append(f"V{kt}")
            ds[g].append(Cond([wait_vm(*tags), raw("s_barrier", "bar")]))
        ds[g] += slot_frag(kt + (m // 16), m % 16)
    sm = softmax_stream(kt, kt % 2, kt % 2, kt == 0)
    if kt == 0:
        pre += [valu("v_mul_f32", v(vMC), s(sC), v(vT1))] + lred_head()
        spread(va, lred_rest(), 0, 2)
        va[3] += bad_update()
        spread(va, sm, 0, 13)
        spread(va, pack_stream(0), 12, 15)
    elif kt == 1:
        va[0] += xor_addrs()
        spread(va, pack_stream(1), 0, 3)
        spread(va, pack_stream(2), 4, 7)
        spread(va, pack_stream(3), 8, 11)
        spread(va, sm, 0, 15)
        spread(ds, o_writes(0), 4, 5)
        spread(ds, o_reads(0), 6, 7)
        spread(ds, o_stores(0), 10, 13)
        spread(ds, o_writes(1), 12, 13)
        spread(ds, o_reads(1), 14, 15)
    elif kt == 2:
        spread(va, sm, 0, 15)
        spread(ds, o_stores(1), 2, 5)
        va[6] += [salu("s_mov_b32", s(sO + 2), QBYTES), salu("s_lshl_b32", s(sOoff), s(sTile), 16),
                  salu("s_add_u32", s(sOoff), s(sOoff), s(sBase))]
    elif kt == 6:
        spread(va, sm, 0, 15)
        spread(ds, q_writes(QR, 0), 0, 1)
        spread(ds, q_reads(0), 4, 5)
        spread(ds, q_writes(QR, 1), 6, 7)
        spread(ds, q_reads(1), 8, 9)
        va[9] += [raw(f"s_cmp_ge_u32 s{sTile}, 2", "salu", rd=[s(sTile)]),
                  raw(f"s_cselect_b32 s{sQ+2}, 0, s{sQ+2}", "salu", rd=[s(sQ + 2)], wr=[s(sQ + 2)])]
        spread(ds, q_loads(QR, s(sQoff)), 10, 13)
        va[14] += [salu("s_add_u32", s(sQoff), s(sQoff), 65536)]
    elif kt == 7:
        spread(va, sm, 0, 13)
        spread(va, max_stream(0), 11, 15)
    else:
        spread(va, sm, 0, 15)
    seq = list(pre)
    for g in range(16):
        seq.append(slot_mfma(kt, g))
        seq += ds[g]
        seq += va[g]
    return seq

def flatten(seq, first):
    st, tr = [], []
    for x in seq:
        if isinstance(x, Cond):
            st += x.head + x.body + x.tail
            tr += x.head + (x.body if first else [])
        else:
            st.append(x); tr.append(x)
    return st, tr

pro = []
A = pro.append
A(raw("s_cmp_ge_u32 s2, 256", "salu", rd=["s2"]))
A(raw("s_cbranch_scc1 L_end", "br"))
pro += stamp(44) + stamp(46, True)
A(raw("s_load_dwordx4 s[4:7], s[0:1], 0", "smem"))
A(raw("s_load_dwordx4 s[24:27], s[0:1], 16", "smem"))
tA, tB, tC, tD, vKd, vVd, vLane = SS, SS + 1, SS + 2, SS + 3, SS + 4, SS + 5, SS + 6
A(valu("v_lshrrev_b32", v(tA), 6, "v0"))
A(valu("v_and_b32", v(vLane), 63, "v0"))
A(raw(f"v_readfirstlane_b32 s{sWave}, v{tA}", "rfl", rd=[v(tA)], wr=[s(sWave)]))
A(salu("s_lshr_b32", "s38", "s2", 4))
A(salu("s_lshl_b32", "s38", "s38", 3))
A(salu("s_and_b32", "s39", "s2", 7))
A(salu("s_add_u32", "s38", "s38", "s39"))
A(salu("s_lshr_b32", "s39", "s2", 3))
A(salu("s_and_b32", "s39", "s39", 1))
A(salu("s_lshl_b32", s(sKV), "s38", 16))
A(salu("s_lshl_b32", "s38", "s38", 1))
A(salu("s_add_u32", "s38", "s38", "s39"))
A(salu("s_lshl_b32", s(sBase), "s38", 18))
A(salu("s_lshl_b32", "s39", s(sWave), 13))
A(salu("s_add_u32", s(sBase), s(sBase), "s39"))
A(valu("v_lshrrev_b32", v(tA), 3, v(vLane)))
A(valu("v_and_b32", v(tB), 7, v(vLane)))
A(valu("v_lshlrev_b32", v(vG), 10, v(tA)))
A(valu("v_lshl_add_u32", v(vG), v(tB), 4, v(vG)))
A(salu("s_and_b32", "s40", s(sWave), 3))
A(salu("s_lshr_b32", "s41", s(sWave), 2))
A(salu("s_lshr_b32", "s42", "s40", 1))
A(salu("s_lshl_b32", "s40", "s40", 11))
A(salu("s_lshl_b32", "s41", "s41", 7))
A(salu("s_add_u32", "s40", "s40", "s41"))
A(valu("v_and_b32", v(tC), 1, v(tA)))
A(valu("v_xor_b32", v(tC), "s42", v(tC)))
A(valu("v_lshrrev_b32", v(tD), 4, v(vLane)))
A(valu("v_lshl_add_u32", v(tC), v(tD), 1, v(tC)))
A(valu("v_lshlrev_b32", v(vKd), 8, v(tB)))
A(valu("v_lshl_add_u32", v(vKd), v(tC), 4, v(vKd)))
A(valu("v_add_u32", v(vKd), "s40", v(vKd)))
A(valu("v_bfe_u32", v(tC), v(vLane), 2, 2))
A(valu("v_xor_b32", v(tC), v(tC), v(tD)))
A(valu("v_lshlrev_b32", v(vVd), 8, v(tD)))
A(valu("v_lshl_add_u32", v(vVd), v(tC), 6, v(vVd)))
A(valu("v_and_b32", v(tC), 3, v(vLane)))
A(valu("v_lshl_add_u32", v(vVd), v(tC), 4, v(vVd)))
A(salu("s_lshl_b32", "s41", s(sWave), 10))
A(valu("v_add_u32", v(vVd), "s41", v(vVd)))
A(raw("s_waitcnt lgkmcnt(0)", "fullwait"))
for srd, lo, nb in ((sQ, 4, QBYTES), (sK, 6, KBYTES), (sV, 24, KBYTES), (sO, 26, 0)):
    A(salu("s_mov_b32", s(srd), s(lo)))
    A(salu("s_and_b32", s(srd + 1), s(lo + 1), 0xffff))
    A(salu("s_mov_b32", s(srd + 2), nb))
    A(salu("s_mov_b32", s(srd + 3), 0x20000))
pro += q_loads(T, s(sBase))
order = ["K0", "K1", "K2", "V0", "K3", "V1", "K4", "V2", "K5", "V3", "K6", "V4", "K7", "V5", "V6", "V7"]
for tag in order:
    kt = int(tag[1]); isv = tag[0] == "V"
    A(salu("s_add_u32", "m0", "s41", kt * 8192 + (LDS_V if isv else 0)))
    A(salu("s_add_u32", "s42", s(sKV), kt * 8192))
    A(buf_load_lds(vVd if isv else vKd, sV if isv else sK, "s42", 0, KVF, tag=tag))
A(salu("s_add_u32", s(sQoff), s(sBase), 65536))
pro += q_loads(QR, s(sQoff))
A(salu("s_add_u32", s(sQoff), s(sQoff), 65536))
pro += stamp(48)
A(salu("s_mov_b32", s(sOoff), s(sBase)))
A(salu("s_mov_b32", s(sC), fbits(math.log2(math.e) / math.sqrt(128.0))))
A(salu("s_mov_b32", s(sThr), fbits(2.0 ** 30)))
A(salu("s_mov_b32", s(sTile), 0))
A(salu("s_mov_b32", s(sBad), 0))
A(salu("s_lshl_b32", "s43", s(sWave), 12))
A(salu("s_add_u32", "s43", "s43", LDS_SCR))
A(valu("v_lshlrev_b32", v(tC), 1, v(tA)))
A(valu("v_and_b32", v(tC), 7, v(tC)))
A(valu("v_xor_b32", v(tC), v(tC), v(tB)))
A(valu("v_lshlrev_b32", v(vRw), 9, v(tA)))
A(valu("v_lshl_add_u32", v(vRw), v(tC), 4, v(vRw)))
A(valu("v_add_u32", v(vRw), "s43", v(vRw)))
A(valu("v_and_b32", v(tA), 31, v(vLane)))
A(valu("v_lshrrev_b32", v(tB), 5, v(vLane)))
A(valu("v_bfe_u32", v(tC), v(vLane), 1, 3))
A(valu("v_xor_b32", v(tC), v(tC), v(tB)))
A(valu("v_lshlrev_b32", v(vFr), 7, v(tA)))
A(valu("v_lshl_add_u32", v(vFr), v(tC), 4, v(vFr)))
A(valu("v_add_u32", v(vFr), "s43", v(vFr)))
A(valu("v_lshrrev_b32", v(tC), 4, v(tA)))
A(valu("v_xor_b32", v(tC), v(tC), v(tB)))
A(valu("v_and_b32", v(tD), 7, v(vLane)))
A(valu("v_lshl_add_u32", v(tC), v(tC), 3, v(tD)))
A(valu("v_lshrrev_b32", v(tD), 3, v(tA)))
A(valu("v_lshlrev_b32", v(vK), 10, v(tD)))
A(valu("v_lshl_add_u32", v(vK), v(tC), 4, v(vK)))
A(valu("v_bfe_u32", v(tC), v(vLane), 2, 2))
A(valu("v_lshl_add_u32", v(tD), v(tB), 2, v(tC)))
A(valu("v_lshlrev_b32", v(vV), 8, v(tD)))
A(valu("v_lshl_add_u32", v(vV), v(tC), 6, v(vV)))
A(valu("v_bfe_u32", v(tC), v(vLane), 4, 1))
A(valu("v_lshl_add_u32", v(vV), v(tC), 5, v(vV)))
A(valu("v_and_b32", v(tC), 1, v(vLane)))
A(valu("v_lshl_add_u32", v(vV), v(tC), 4, v(vV)))
A(valu("v_bfe_u32", v(tC), v(vLane), 1, 1))
A(valu("v_lshl_add_u32", v(vV), v(tC), 3, v(vV)))
A(valu("v_add_u32", v(vV), LDS_V, v(vV)))
for t in range(1, 4):
    A(valu("v_xor_b32", v(vV + t), t * 64, v(vV)))
pro += xor_addrs()
if opt["prio"]:
    A(raw(f"s_cmp_ge_u32 s{sWave}, 4", "salu", rd=[s(sWave)]))
    A(raw("s_cbranch_scc0 L_noprio", "br"))
    A(raw("s_setprio 1", "salu"))
    A(label("L_noprio"))
pro += q_writes(T, 0) + q_reads(0) + q_writes(T, 1) + q_reads(1)
pro += stamp(50)
A(wait_vm("K0", "K1"))
A(raw("s_barrier", "bar"))
pro += stamp(62)
for st in range(8):
    pro += kfrag(st, 0, st)
for st in range(8):
    A(qk_mfma(0, st, st))
    if st < D:
        pro += slot_frag(0, st)
pro += max_stream(0)

steps = []
for kt in range(8):
    steps += make_step(kt)
loop_ctl = [salu("s_add_u32", s(sTile), s(sTile), 1),
            raw(f"s_cmp_lt_u32 s{sTile}, 4", "salu", rd=[s(sTile)]),
            raw("s_cbranch_scc1 L_loop", "br")]
body_st, body_tr0 = flatten(steps, True)
_, body_tr = flatten(steps, False)
body_st = [label("L_loop")] + body_st + loop_ctl
body_tr0 += loop_ctl
body_tr += loop_ctl

tail = []
tail += stamp(52)
for m in range(8, 16):
    tail += vfrag(m % 8, 7, (m - 8) >> 1, (m - 8) & 1)
tail += lred_head() + lred_rest() + bad_update() + xor_addrs()
for m in range(8, 16):
    tail.append(pv_mfma(1, (m - 8) >> 1, (m - 8) & 1, m % 8, False))
tail += pack_stream(0) + pack_stream(1) + o_writes(0) + o_reads(0) + pack_stream(2) + pack_stream(3)
tail += o_stores(0) + o_writes(1) + o_reads(1) + o_stores(1)
if STAMP:
    tail += stamp(54) + [raw("s_waitcnt vmcnt(0) lgkmcnt(0)", "fullwait")] + stamp(56) + stamp(58, True)
    tail += [raw("s_load_dwordx2 s[4:5], s[0:1], 40", "smem"), raw("s_waitcnt lgkmcnt(0)", "fullwait"),
             raw("s_mov_b32 s96, s62"),
             raw("s_mov_b32 s8, s4"), raw("s_and_b32 s9, s5, 0xffff"), raw("s_mov_b32 s10, 0x10000000"), raw("s_mov_b32 s11, 0x20000"),
             raw(f"s_lshl_b32 s35, s2, 3"), raw(f"s_add_u32 s35, s35, s{sWave}"), raw("s_mul_i32 s35, s35, 192"),
             raw("s_getreg_b32 s97, hwreg(HW_REG_HW_ID)"), raw("s_getreg_b32 s98, hwreg(HW_REG_XCC_ID)"),
             raw("v_mov_b32 v16, 0", "valu")]
    regs = [44, 46, 48, 50, 52, 54, 56, 58] + list(range(64, 99))
    for i, r in enumerate(regs):
        tail += [raw(f"v_mov_b32 v17, s{r}", "valu"), raw(f"buffer_store_dword v17, v16, s[8:11], s35 offen offset:{4*i}", "vst"), raw("s_nop 1")]
tail += [salu("s_and_b32", s(sBad), s(sBad), 15), raw("s_cbranch_scc1 L_slow", "br"), label("L_end"), raw("s_endpgm", "br")]

vD, vKa, vVa, vM = T, T + 1, T + 2, T + 6
slow_pre = [label("L_slow"), raw("s_waitcnt vmcnt(0) lgkmcnt(0)", "fullwait"),
            salu("s_mov_b32", s(sQ + 2), QBYTES),
            raw(f"v_mbcnt_lo_u32_b32 v{vD}, -1, 0", "valu", wr=[v(vD)]),
            raw(f"v_mbcnt_hi_u32_b32 v{vD}, -1, v{vD}", "valu", rd=[v(vD)], wr=[v(vD)]),
            valu("v_lshrrev_b32", v(vM), 5, v(vD)),
            valu("v_and_b32", v(vD), 31, v(vD)),
            valu("v_lshlrev_b32", v(vD), 8, v(vD)),
            valu("v_lshl_add_u32", v(vD), v(vM), 4, v(vD)),
            salu("s_mov_b32", "s40", s(sBase)),
            salu("s_mov_b32", "s41", 8)]
st_head = [label("L_slow_tile"),
           raw(f"s_and_b32 s42, s{sBad}, s41", "salu", rd=[s(sBad), "s41"], wr=["s42"]),
           raw("s_cbranch_scc0 L_slow_next", "br")]
st_a = [buf_load(QC + 4 * st, 4, vD, sQ, "s40", st * 32) for st in range(8)]
st_a += [valu("v_mov_b32", v(vM), 0xff800000), valu("v_mov_b32", v(vKa), v(vK)), salu("s_mov_b32", "s43", 0)]
p1 = [label("L_slow_p1")]
for st in range(8): p1 += kfrag(st, 0, st, vKa)
for st in range(8): p1.append(qk_mfma(0, st, st))
for i in range(0, 16, 2): p1.append(valu("v_max3_f32", v(vM), v(vM), v(SS + i), v(SS + i + 1)))
p1 += [valu("v_add_u32", v(vKa), 8192, v(vKa)), salu("s_add_u32", "s43", "s43", 1),
       raw("s_cmp_lt_u32 s43, 8", "salu", rd=["s43"]), raw("s_cbranch_scc1 L_slow_p1", "br")]
st_b = [valu("v_mov_b32", v(vT2), v(vM)), permswap(vM, vT2), valu("v_max_f32", v(vM), v(vM), v(vT2)),
        valu("v_mul_f32", v(vMC), s(sC), v(vM)),
        valu("v_mov_b32", v(vL0), 0), valu("v_mov_b32", v(vL1), 0), valu("v_mov_b32", v(vKa), v(vK)),
        salu("s_mov_b32", "s43", 0)]
st_b += [valu("v_mov_b32", v(vVa + t), v(vV + t)) for t in range(4)]
st_b += [valu("v_mov_b32", v(O + i), 0) for i in range(64)]
p2 = [label("L_slow_p2")]
for st in range(8): p2 += kfrag(st, 0, st, vKa)
for st in range(8): p2.append(qk_mfma(0, st, st))
for m in range(8): p2 += vfrag(m, 0, m >> 1, m & 1, vVa)
p2 += softmax_stream(0, 0, 0, False)
for m in range(8): p2.append(pv_mfma(0, m >> 1, m & 1, m, False))
p2 += [valu("v_add_u32", v(vKa), 8192, v(vKa))] + [valu("v_add_u32", v(vVa + t), 8192, v(vVa + t)) for t in range(4)]
p2 += [salu("s_add_u32", "s43", "s43", 1), raw("s_cmp_lt_u32 s43, 8", "salu", rd=["s43"]), raw("s_cbranch_scc1 L_slow_p2", "br")]
st_c = lred_head() + lred_rest()[:3] + [trans("v_rcp_f32", v(vLI), v(vT2))]
TS = T + 8
for t in range(4):
    b = O + 16 * t
    for p in range(8):
        st_c.append(valu("v_mul_f32", v(b + 2 * p), v(b + 2 * p), v(vLI)))
        st_c.append(valu("v_mul_f32", v(b + 2 * p + 1), v(b + 2 * p + 1), v(vLI)))
    for p in range(8):
        st_c.append(valu("v_cvt_pk_bf16_f32", v(QR + 8 * t + p), v(b + 2 * p), v(b + 2 * p + 1)))
    for gg in range(2):
        st_c.append(buf_store(QR + 8 * t + 4 * gg, 4, vD, sO, "s40", 64 * t + 32 * gg))
st_next = [label("L_slow_next"), salu("s_add_u32", "s40", "s40", 65536), salu("s_lshr_b32", "s41", "s41", 1),
           raw("s_cbranch_scc1 L_slow_tile", "br"), raw("s_endpgm", "br")]
slow = slow_pre + st_head + st_a + p1 + st_b + p2 + st_c + st_next

main_tr = pro + body_tr0 + body_tr + body_tr + body_tr + tail
one = st_head + st_a + p1 + p1 + p1 + st_b + p2 + p2 + p2 + st_c + st_next
slow_tr = main_tr + slow_pre + one + one
for _ in range(2):
    analyze_waits(slow_tr)
analyze_hazards(slow_tr)
prog = pro + body_st + tail + slow

hdr = """; GQA attention, B32 Hq32 Hkv4 Sq256 Sk256 D128 bf16.  Generated by gen/gen.py (hand-written generator).
; @launch grid=(256,1,1) block=(512,1,1) lds=163840
.amdgcn_target "amdgcn-amd-amdhsa--gfx950"
.text
.globl standalone__gqa_softmax__near_ridge_kernel
.p2align 8
.type standalone__gqa_softmax__near_ridge_kernel,@function
standalone__gqa_softmax__near_ridge_kernel:
"""
ftr = """
.section .rodata,"a"
.p2align 6
.amdhsa_kernel standalone__gqa_softmax__near_ridge_kernel
  .amdhsa_next_free_vgpr 256
  .amdhsa_next_free_sgpr 102
  .amdhsa_accum_offset 256
  .amdhsa_group_segment_fixed_size 0
  .amdhsa_kernarg_size 48
  .amdhsa_user_sgpr_count 2
  .amdhsa_user_sgpr_kernarg_segment_ptr 1
  .amdhsa_system_sgpr_workgroup_id_x 1
.end_amdhsa_kernel
"""
print(hdr + emit(prog) + ftr)
```

```python
def vr(a, n=1):
    return [f"v{i}" for i in range(a, a + n)]
def sr(a, n=1):
    return [f"s{i}" for i in range(a, a + n)]
def V(a, n=1):
    return f"v{a}" if n == 1 else f"v[{a}:{a+n-1}]"
def S(a, n=1):
    return f"s{a}" if n == 1 else f"s[{a}:{a+n-1}]"

class I:
    __slots__ = ("text", "kind", "rd", "wr", "tag", "want", "lgkm", "vm", "nop", "a", "b", "c", "data", "cost", "also", "passes")
    def __init__(self, text, kind, rd=(), wr=(), tag=None, want=None, a=(), b=(), c=(), data=()):
        self.text = text; self.kind = kind
        self.rd = set(rd); self.wr = set(wr)
        self.tag = tag; self.want = want
        self.lgkm = None; self.vm = None; self.nop = 0
        self.also = set()
        self.passes = 8
        self.a = set(a); self.b = set(b); self.c = set(c); self.data = set(data)
    def __repr__(self):
        return self.text

VALU_KINDS = ("valu", "trans", "perm", "rfl")

def _src(x):
    if isinstance(x, str):
        t = x
        core = t.lstrip("-")
        if core.startswith("v") and core[1:].isdigit():
            return t, [core]
        if core.startswith("s") and core[1:].isdigit():
            return t, [core]
        if core in ("vcc", "exec", "m0"):
            return t, [core]
        return t, []
    if isinstance(x, float):
        return repr(x), []
    if isinstance(x, int):
        return (str(x) if -16 <= x <= 64 else hex(x & 0xffffffff)), []
    raise ValueError(x)

def valu(op, d, *srcs, kind="valu", extra_rd=(), extra_wr=()):
    ts = []; rd = []
    for s in srcs:
        t, r = _src(s); ts.append(t); rd += r
    return I(f"{op} {d}, " + ", ".join(ts), kind, rd=rd + list(extra_rd), wr=[d] + list(extra_wr))

def trans(op, d, s):
    return valu(op, d, s, kind="trans")

def salu(op, d, *srcs, scc_w=True, scc_r=False):
    ts = []; rd = []
    for s in srcs:
        t, r = _src(s); ts.append(t); rd += r
    wr = []
    if d is not None:
        wr.append(d)
        txt = f"{op} {d}, " + ", ".join(ts)
    else:
        txt = f"{op} " + ", ".join(ts)
    return I(txt, "salu", rd=rd, wr=wr)

def raw(text, kind="salu", rd=(), wr=()):
    return I(text, kind, rd=rd, wr=wr)

def mfma(d, a, b, c):
    ct = "0" if c is None else V(c, 16)
    cr = [] if c is None else vr(c, 16)
    return I(f"v_mfma_f32_32x32x16_bf16 {V(d,16)}, {V(a,4)}, {V(b,4)}, {ct}", "mfma",
             rd=vr(a, 4) + vr(b, 4) + cr, wr=vr(d, 16), a=vr(a, 4), b=vr(b, 4), c=cr)

def mfma16(d, a, b, c):
    ct = "0" if c is None else V(c, 4)
    cr = [] if c is None else vr(c, 4)
    i = I(f"v_mfma_f32_16x16x32_bf16 {V(d,4)}, {V(a,4)}, {V(b,4)}, {ct}", "mfma",
          rd=vr(a, 4) + vr(b, 4) + cr, wr=vr(d, 4), a=vr(a, 4), b=vr(b, 4), c=cr)
    i.passes = 4
    return i

def ds_write2st64_b64(addr, s0, s1, o0, o1):
    return I(f"ds_write2st64_b64 v{addr}, {V(s0,2)}, {V(s1,2)} offset0:{o0} offset1:{o1}", "dsw",
             rd=[f"v{addr}"] + vr(s0, 2) + vr(s1, 2), data=vr(s0, 2) + vr(s1, 2))

def permswap16(a, b):
    return I(f"v_permlane16_swap_b32 v{a}, v{b}", "perm", rd=[f"v{a}", f"v{b}"], wr=[f"v{a}", f"v{b}"])

def ds_read(d, n, addr, off, tr=False):
    op = {4: "ds_read_b128", 2: "ds_read_b64", 1: "ds_read_b32"}[n]
    if tr: op = "ds_read_b64_tr_b16"
    assert 0 <= off < 65536
    o = f" offset:{off}" if off else ""
    return I(f"{op} {V(d,n)}, v{addr}{o}", "dsr", rd=[f"v{addr}"], wr=vr(d, n))

def ds_write(addr, s, n, off):
    op = {4: "ds_write_b128", 2: "ds_write_b64", 1: "ds_write_b32"}[n]
    o = f" offset:{off}" if off else ""
    return I(f"{op} v{addr}, {V(s,n)}{o}", "dsw", rd=[f"v{addr}"] + vr(s, n), data=vr(s, n))

def buf_load(d, n, voff, srd, soff, off=0, flags="", tag=None):
    op = {4: "buffer_load_dwordx4", 2: "buffer_load_dwordx2", 1: "buffer_load_dword"}[n]
    assert 0 <= off < 4096
    o = f" offset:{off}" if off else ""
    st, sr_ = _src(soff)
    f = (" " + flags) if flags else ""
    return I(f"{op} {V(d,n)}, v{voff}, {S(srd,4)}, {st} offen{o}{f}", "vld",
             rd=[f"v{voff}"] + sr(srd, 4) + sr_, wr=vr(d, n), tag=tag)

def buf_load_lds(voff, srd, soff, off=0, flags="", tag=None):
    o = f" offset:{off}" if off else ""
    st, sr_ = _src(soff)
    f = (" " + flags) if flags else ""
    return I(f"buffer_load_dwordx4 v{voff}, {S(srd,4)}, {st} offen{o}{f} lds", "dma",
             rd=[f"v{voff}", "m0"] + sr(srd, 4) + sr_, tag=tag)

def buf_store(s, n, voff, srd, soff, off=0, flags="", tag=None):
    op = {4: "buffer_store_dwordx4", 2: "buffer_store_dwordx2", 1: "buffer_store_dword"}[n]
    assert 0 <= off < 4096
    o = f" offset:{off}" if off else ""
    st, sr_ = _src(soff)
    f = (" " + flags) if flags else ""
    return I(f"{op} {V(s,n)}, v{voff}, {S(srd,4)}, {st} offen{o}{f}", "vst",
             rd=[f"v{voff}"] + vr(s, n) + sr(srd, 4) + sr_, data=vr(s, n), tag=tag)

def wait_vm(*tags):
    return I("", "waitvm", want=tags)

def label(name):
    return I(name + ":", "label")

def permswap(a, b):
    return I(f"v_permlane32_swap_b32 v{a}, v{b}", "perm", rd=[f"v{a}", f"v{b}"], wr=[f"v{a}", f"v{b}"])

def analyze_waits(trace):
    lq = []
    vq = []
    for ins in trace:
        k = ins.kind
        if k == "label":
            continue
        if k == "fullwait":
            if "lgkmcnt(0)" in ins.text: lq = []
            if "vmcnt(0)" in ins.text: vq = []
            continue
        touch = ins.rd | ins.wr | ins.also
        need = None
        for idx, w in enumerate(lq):
            if w & touch:
                need = len(lq) - 1 - idx
        if need is not None:
            need = min(need, 15)
            ins.lgkm = need if ins.lgkm is None else min(ins.lgkm, need)
        if ins.lgkm is not None:
            lq = lq[len(lq) - ins.lgkm:] if ins.lgkm else []
        need = None
        for idx, (w, tag) in enumerate(vq):
            if (w & touch) or (k == "waitvm" and tag in ins.want):
                need = len(vq) - 1 - idx
        if need is not None:
            need = min(need, 63)
            ins.vm = need if ins.vm is None else min(ins.vm, need)
        if ins.vm is not None:
            vq = vq[len(vq) - ins.vm:] if ins.vm else []
        if k == "dsr": lq.append(set(ins.wr))
        elif k == "dsw": lq.append(set())
        elif k == "vld": vq.append((set(ins.wr), ins.tag))
        elif k in ("vst", "dma"): vq.append((set(), ins.tag))

def _states_of(ins):
    n = 0
    if ins.kind == "label": return 0
    if ins.lgkm is not None or ins.vm is not None: n += 1
    n += ins.nop
    if ins.kind != "waitvm": n += 1
    if ins.kind == "nop": n += ins.cost - 1
    return n

def _required(p, c):
    need = 0
    pk, ck = p.kind, c.kind
    vw = {r for r in p.wr if r[0] == "v" and r != "vcc"}
    sw = {r for r in p.wr if r[0] == "s" or r == "vcc"}
    if pk in VALU_KINDS:
        if ck == "mfma" and vw & c.rd: need = max(need, 2)
        if ck == "perm" and vw & c.rd: need = max(need, 2)
        if ck == "rfl" and vw & c.rd: need = max(need, 1)
        if pk == "trans" and ck in ("valu", "perm", "rfl") and vw & c.rd: need = max(need, 1)
        if sw:
            if ck in VALU_KINDS and sw & c.rd: need = max(need, 2)
            if ck in ("vld", "vst", "dma") and sw & c.rd: need = max(need, 5)
            if ck == "salu" and sw & c.rd: need = max(need, 1)
    if pk == "mfma":
        rdw, ovl, war = {8: (12, 10, 7), 4: (8, 6, 3)}[p.passes]
        if ck == "mfma":
            if p.wr & (c.a | c.b): need = max(need, rdw)
            if p.wr & c.c and (p.wr != c.c or p.passes != c.passes): need = max(need, ovl)
            if p.wr & c.wr and p.wr != c.c: need = max(need, ovl)
        elif ck in VALU_KINDS or ck in ("dsr", "dsw", "vld", "vst", "dma"):
            if p.wr & (c.rd | c.wr): need = max(need, rdw)
        if ck in VALU_KINDS and p.c & c.wr: need = max(need, war)
    if pk == "salu" and "m0" in p.wr and ck == "dma": need = max(need, 1)
    if pk == "vst" and len(p.data) >= 3:
        if ck in VALU_KINDS and p.data & c.wr: need = max(need, 2)
        elif p.data & c.wr: need = max(need, 1)
    return need

def analyze_hazards(trace, horizon=24):
    changed = True
    while changed:
        changed = False
        live = [t for t in trace if t.kind != "label"]
        for i, c in enumerate(live):
            if c.kind == "waitvm": continue
            dist = (1 if (c.lgkm is not None or c.vm is not None) else 0) + c.nop
            j = i - 1
            while j >= 0 and dist < horizon:
                p = live[j]
                req = _required(p, c)
                if req > dist:
                    c.nop += req - dist
                    dist = req
                    changed = True
                dist += _states_of(p)
                j -= 1

def emit(prog):
    out = []
    for ins in prog:
        if ins.kind == "label":
            out.append(ins.text); continue
        n = ins.nop
        while n > 0:
            k = min(n, 16)
            out.append(f"    s_nop {k-1}")
            n -= k
        if ins.lgkm is not None or ins.vm is not None:
            w = []
            if ins.vm is not None: w.append(f"vmcnt({ins.vm})")
            if ins.lgkm is not None: w.append(f"lgkmcnt({ins.lgkm})")
            out.append("    s_waitcnt " + " ".join(w))
        if ins.kind != "waitvm":
            out.append("    " + ins.text)
    return "\n".join(out)


import re as _re
_FLEX = ("v_exp_f32", "v_mul_f32", "v_add_f32", "v_max_f32", "v_mov_b32", "v_sub_f32", "v_xor_b32", "v_rcp_f32",
         "v_permlane32_swap_b32", "v_permlane16_swap_b32", "v_lshlrev_b32", "v_and_b32", "v_add_u32", "v_lshrrev_b32")
def _has_lit(t):
    ops = t.split(None, 1)[1] if " " in t else ""
    return bool(_re.search(r"0x[0-9a-f]+|L_\w+-L_\w+", ops)) or any(
        _re.fullmatch(r"-?\d+", o.strip()) and not -16 <= int(o) <= 64 for o in ops.split(","))
def size_of(t):
    op = t.split()[0]
    if op.startswith("s_"):
        if op.startswith(("s_load", "s_mem")): return 8
        if op.startswith(("s_cbranch", "s_branch", "s_waitcnt", "s_nop", "s_setprio", "s_barrier", "s_endpgm")): return 4
        return 8 if _has_lit(t) else 4
    if op.endswith("_e64"): return 8
    if op in _FLEX or op in ("v_min_u32", "v_mul_u32_u24", "v_readfirstlane_b32") or op.endswith("_e32"):
        return 8 if _has_lit(t) else 4
    return 8
def align_pass(text, mode):
    out = []; off = 0
    lines = text.split("\n")
    for n, l in enumerate(lines):
        t = l.strip()
        if not t or t.endswith(":") or t.startswith((";", ".")):
            out.append(l); continue
        op = t.split()[0]
        if op in _FLEX and not _has_lit(t):
            nxt = next((x.strip() for x in lines[n + 1:] if x.strip() and not x.strip().endswith(":")), "s_nop 0")
            want4 = off % 8 == (4 if mode == 1 else 0) or (nxt.startswith("s_") and size_of(nxt) == 4 and off % 8 == (0 if mode == 1 else 4))
            if not want4:
                t = t.replace(op, op + "_e64", 1); l = "    " + t
        out.append(l); off += size_of(t)
    return "\n".join(out)
```

```python
import sys, struct, math
from asmlib import *

opt = dict(qf="nt", kvf="", of="sc1", prio=1, stamp=0, warm=0, cpf=1, xsm="", xnolds=0, early=1, nsite=6, na=5, pk0=8, al=0, up=6, mid=2, per=2, lb=0, drop="")
for a in sys.argv[1:]:
    k, v = a.split("=")
    opt[k] = int(v) if v.lstrip("-").isdigit() else v.replace("+", " ")
QF, KVF, OF = opt["qf"], opt["kvf"], opt["of"]
BROKEN = bool(opt["xsm"] or opt["xnolds"])

def fbits(x): return struct.unpack("<I", struct.pack("<f", x))[0]

vX, vK, vV, vFr, vOw, vRw, vG, vTa, vTb, ONES, NM, vL = 0, 1, 2, 6, 7, 8, 9, 10, 11, 12, 16, 24
vMa, vMb, vKs = vTa, vTb, vL
FR, QC, QR, T, SS, O = 32, 64, 96, 128, 160, 192
sQ, sK, sV, sO = 8, 12, 16, 20
sC, sThr, sTile, sQoff, sOoff, sBad, sWave, sBase, sKV = 28, 29, 30, 31, 32, 33, 34, 36, 37
sRet, sSub, sChk, sLast, sCut, sCnt = 52, 54, 48, 43, 38, 39
QBYTES, KBYTES = 64 << 20, 8 << 20
LDS_V, LDS_SCR = 65536, 131072
NS = 34
TSTRIDE = 32768
NA = opt['na']; NB = 8 - NA
LB = opt['lb']
if LB: NA = NB = 24; BROKEN = True
if 0: pass

def v(n): return f"v{n}"
def s(n): return f"s{n}"
def Sreg(sb, kb, qb): return SS + 16 * sb + 8 * qb + 4 * kb
def Preg(sb, qb): return SS + 16 * sb + 8 * qb
def Oreg(dt, qb): return O + (dt * 2 + qb) * 4
def Qreg(qb, ds): return QC + (qb * 4 + ds) * 4

def kfrag(kt, kb, ds, addr=vK):
    return [ds_read(FR + 4 * (4 * kb + ds), 4, addr, kt * 8192 + (ds >> 1) * 4096 + kb * 2048 + (ds & 1) * 512)]
def vfrag(kt, dt, addr=vV):
    o = kt * 8192 + (dt >> 2) * 1024
    return [ds_read(FR + 4 * dt, 2, addr + (dt & 3), o, tr=True),
            ds_read(FR + 4 * dt + 2, 2, addr + (dt & 3), o + 4096, tr=True)]
def qk_mfma(sb, m, shifted):
    kb, qb, ds = m >> 3, (m >> 2) & 1, m & 3
    d = Sreg(sb, kb, qb)
    c = d if ds else (NM + 4 * qb if shifted else None)
    return mfma16(d, FR + 4 * (4 * kb + ds), Qreg(qb, ds), c)
def pv_mfma(sb, m, first):
    dt, qb = m >> 1, m & 1
    return mfma16(Oreg(dt, qb), FR + 4 * dt, Preg(sb, qb), None if first else Oreg(dt, qb))

def l_mfma(sb, qb, first):
    return mfma16(vL + 4 * qb, ONES, Preg(sb, qb), None if first else vL + 4 * qb)

def softmax_stream(sb, first):
    pairs = [(kb, qb, h) for kb in range(2) for qb in range(2) for h in range(2)]
    out = []; seen = set()
    lag = 1 if first else 0
    for p in range(8 + 1 + lag):
        if first and p < 8:
            kb, qb, h = pairs[p]; r = Sreg(sb, kb, qb) + 2 * h
            out.append(valu("v_add_f32", v(r), v(r), v(NM + 4 * qb)))
            out.append(valu("v_add_f32", v(r + 1), v(r + 1), v(NM + 4 * qb)))
        if lag <= p < 8 + lag:
            kb, qb, h = pairs[p - lag]; r = Sreg(sb, kb, qb) + 2 * h
            out.append(trans("v_exp_f32", v(r), v(r)))
            out.append(trans("v_exp_f32", v(r + 1), v(r + 1)))
        if p >= 1 + lag:
            kb, qb, h = pairs[p - 1 - lag]; r = Sreg(sb, kb, qb) + 2 * h
            out.append(valu("v_cvt_pk_bf16_f32", v(Preg(sb, qb) + 2 * kb + h), v(r), v(r + 1)))
    for x in opt["xsm"].split(","):
        if x: out = [i for i in out if not i.text.startswith(x)]
    return out

def xreduce(op, a, b, ra, rb):
    return [permswap(a, b), valu(op, v(ra), v(a), v(b)), valu("v_mov_b32", v(rb), v(ra)),
            permswap16(ra, rb), valu(op, v(ra), v(ra), v(rb)), valu("v_mov_b32", v(rb), v(ra)),
            permswap(ra, rb)]
def max_first16(sb):
    a, b = Sreg(sb, 0, 0), Sreg(sb, 0, 1)
    return [valu("v_max3_f32", v(vMa), v(a), v(a + 1), v(a + 2)), valu("v_max_f32", v(vMa), v(vMa), v(a + 3)),
            valu("v_max3_f32", v(vMb), v(b), v(b + 1), v(b + 2)), valu("v_max_f32", v(vMb), v(vMb), v(b + 3))]
def max_finish():
    return xreduce("v_max_f32", vMa, vMb, vMa, vMb) + \
        [valu("v_sub_f32", v(NM + i), 0, v((vMa, vMb)[i >> 2])) for i in range(8)]
def lred(check=True):
    chk = [valu("v_max_f32", v(vX), v(vL), v(vL + 4)),
           raw(f"v_cmp_nge_f32_e64 s[{sChk}:{sChk+1}], s{sThr}, v{vX}", "valu", rd=[s(sThr), v(vX)], wr=sr(sChk, 2)),
           raw(f"v_cmp_u_f32_e64 s[{sChk+2}:{sChk+3}], v{vL}, v{vL+4}", "valu", rd=[v(vL), v(vL + 4)], wr=sr(sChk + 2, 2))] if check else []
    return [trans("v_rcp_f32", v(vTa), v(vL)), trans("v_rcp_f32", v(vTb), v(vL + 4))] + chk
def bad_update():
    return [[raw(f"s_or_b64 s[{sChk}:{sChk+1}], s[{sChk}:{sChk+1}], s[{sChk+2}:{sChk+3}]", "salu", rd=sr(sChk, 4), wr=sr(sChk, 2)),
             raw(f"s_addc_u32 s{sBad}, s{sBad}, s{sBad}", "salu", rd=[s(sBad)], wr=[s(sBad)])]]

def pack_stream(i0, i1, dst=T):
    out = []; pend = []
    for i in range(i0, i1):
        b = O + 4 * i; li = (vTa, vTb)[i & 1]
        for h in range(2):
            out.append(valu("v_mul_f32", v(b + 2 * h), v(b + 2 * h), v(li)))
            out.append(valu("v_mul_f32", v(b + 2 * h + 1), v(b + 2 * h + 1), v(li)))
            out += pend
            pend = [valu("v_cvt_pk_bf16_f32", v(dst + 2 * i + h), v(b + 2 * h), v(b + 2 * h + 1))]
    return out + pend

def xaddr(base, x):
    if x == 0: return [], base
    return [valu("v_xor_b32", v(vX), x, v(base))], vX
def o_writes(half):
    out = []
    for x in range(4):
        pre, a = xaddr(vOw, x << 5); dt = 4 * half + x
        out.append(pre + [ds_write2st64_b64(a, T + 4 * dt, T + 4 * dt + 2, 0, 4)])
    return out
def o_reads(half):
    pre, a = xaddr(vRw, 16)
    return [[ds_read(T + 16 * half, 4, vRw, 0)], [ds_read(T + 16 * half + 4, 4, vRw, 128)],
            pre + [ds_read(T + 16 * half + 8, 4, a, 256)], [ds_read(T + 16 * half + 12, 4, a, 384)]]
def o_stores(half):
    return [buf_store(T + 16 * half + 4 * j, 4, vG, sO, s(sOoff), j * 256 + half * 128, OF) for j in range(4)]
def q_writes(src, half):
    pre, a = xaddr(vRw, 16)
    return [[ds_write(vRw, src + 16 * half, 4, 0)], [ds_write(vRw, src + 16 * half + 4, 4, 128)],
            pre + [ds_write(a, src + 16 * half + 8, 4, 256)], [ds_write(a, src + 16 * half + 12, 4, 384)]]
def q_reads(half):
    pre, a = xaddr(vFr, 64)
    return [[ds_read(Qreg(0, 2 * half), 4, vFr, 0)], [ds_read(Qreg(1, 2 * half), 4, vFr, 2048)],
            pre + [ds_read(Qreg(0, 2 * half + 1), 4, a, 0)], [ds_read(Qreg(1, 2 * half + 1), 4, a, 2048)]]
def flat(ll): return [x for l in ll for x in l]
def q_loads(dst, soff):
    return [buf_load(dst + 16 * half + 4 * j, 4, vG, sQ, soff, j * 256 + half * 128, QF)
            for half in range(2) for j in range(4)]

class Cond:
    blocks = []
    def __init__(self, body):
        n = len(Cond.blocks)
        self.head = [raw(f"s_cbranch_vccnz L_sync{n}", "br"), label(f"L_back{n}")]
        self.ool = [label(f"L_sync{n}")] + body + [raw(f"s_branch L_back{n}", "br")]
        Cond.blocks.append(self)
class Guard:
    n = 0
    def __init__(self, body):
        Guard.n += 1
        on = False
        self.head = [raw(f"s_cbranch_execz L_g{Guard.n}", "br")] if on else []
        self.body = body
        self.tail = [label(f"L_g{Guard.n}")] if on else []
class Call:
    def __init__(self):
        self.head = [raw(f"s_swappc_b64 s[{sRet}:{sRet+1}], s[{sSub}:{sSub+1}]", "br")]
def wexit(on=True):
    return [raw("s_cbranch_execz L_warm_ret", "br")] if opt["warm"] and on else []

def spread(gaps, stream, g0, g1):
    n = g1 - g0 + 1
    for i, ins in enumerate(stream):
        g = gaps[g0 + (i * n) // len(stream)]
        if isinstance(ins, list): g += ins
        else: g.append(ins)

vKd, vVd = QR + 28, QR + 29
def dma(tag):
    kt = int(tag[1]); isv = tag[0] == "V"
    out = []
    for h in range(2):
        out += [salu("s_add_u32", "m0", "s41", kt * 8192 + h * 4096 + (LDS_V if isv else 0)),
                salu("s_add_u32", "s42", s(sKV), kt * 8192 + h * (4096 if isv else 128)),
                buf_load_lds(vVd if isv else vKd, sV if isv else sK, "s42", 0, KVF, tag=tag)]
    return out
def a_sync(last):
    return [raw("s_barrier", "bar")] + ([raw("s_mov_b64 vcc, 0", "salu", wr=["vcc"])] if last else [])

KT = O
kscale = [label("L_kscale"), ds_read(KT, 4, vKs, 0), ds_read(KT + 4, 4, vKs, 4096)]
for i in range(8):
    kscale += [valu("v_lshlrev_b32", v(KT + 8 + (i & 3)), 16, v(KT + i)),
               valu("v_and_b32", v(KT + i), 0xffff0000, v(KT + i)),
               valu("v_mul_f32", v(KT + 8 + (i & 3)), s(sC), v(KT + 8 + (i & 3))),
               valu("v_mul_f32", v(KT + i), s(sC), v(KT + i)),
               valu("v_cvt_pk_bf16_f32", v(KT + i), v(KT + 8 + (i & 3)), v(KT + i))]
    if i == 3: kscale.append(ds_write(vKs, KT, 4, 0))
kscale += [ds_write(vKs, KT + 4, 4, 4096), valu("v_add_u32", v(vKs), 8192, v(vKs)),
           raw(f"s_setpc_b64 s[{sRet}:{sRet+1}]", "br")]

STAMP = opt["stamp"]
def stamp(reg, real=False):
    return [raw(f"s_mem{'real' if real else ''}time s[{reg}:{reg+1}]", "smem")] if STAMP else []

def frag_reads(kt):
    k1, vp = (kt + 1) % 8, (kt - 1) % 8
    r = {0: vfrag(vp, 6), 2: vfrag(vp, 7)}
    for g, (kb, ds_) in zip(range(4, 20, 2), [(kb, d) for kb in range(2) for d in range(4)]):
        r[g] = kfrag(k1, kb, ds_)
    for dt in range(6): r[22 + 2 * dt] = vfrag(kt, dt)
    return r
QLD_AT = [(7, 20), (7, 33), (0, 20), (0, 33), (1, 33), (2, 20), (3, 20), (4, 20)]
OST_AT = [(2, 6), (2, 33), (3, 33), (4, 10), (4, 33), (5, 20), (5, 33), (6, 6)]
WAITGRP = {0: (0, 16), 9: (16, 16), 17: (0, 16), 26: (16, 16)}
EGAPS = list(range(1, 33, 2))

def cost(i):
    if isinstance(i, Cond): return 0
    return {"trans": 2, "perm": 2, "dsw": 4, "vld": 2, "vst": 3, "salu": 0, "smem": 0}.get(i.kind, 1)

class Step:
    def __init__(self):
        self.sa = [[] for _ in range(NS)]
        self.ex = [[] for _ in range(NS)]
        self.ds = [[] for _ in range(NS)]
        self.va = [[] for _ in range(NS)]
    def load(self, g):
        n = sum(cost(i) for l in (self.ex[g], self.ds[g], self.va[g]) for i in l)
        n += max(0, len(self.sa[g]) - 1) + (1 if (g + 1) % NS in WAITGRP else 0)
        if self.ex[g] and self.ds[g]: n += 2
        return n
    def place(self, items):
        import functools
        base = [self.load(g) for g in range(NS)]
        pen = lambda x: 10 * max(0, x - 2) ** 2 + x * x * 0.01
        @functools.lru_cache(None)
        def best(k, g, add):
            if k == len(items): return (pen(base[g] + add) - pen(base[g]), ())
            ins, lo, hi = items[k]
            res = (1e18, ())
            if lo <= g <= hi:
                c, p = best(k + 1, g, add + cost(ins)); res = (c, (g,) + p)
            if g < hi:
                c, p = best(k, g + 1, 0); c += pen(base[g] + add) - pen(base[g])
                if c < res[0] - 1e-9: res = (c, p)
            return res
        c, pl = best(0, items[0][1], 0)
        assert c < 1e17
        for (ins, _, _), g in zip(items, pl): self.va[g].append(ins)
    def softmax(self, sb, first, egaps=EGAPS, last=NS - 1):
        st = softmax_stream(sb, first)
        ex = [i for i in st if i.kind == "trans"]
        where = {}
        for i, g in zip(ex, egaps):
            self.ex[g].append(i); where[next(iter(i.wr))] = g
        adds = [(i, 0, where[next(iter(i.wr))] - 1) for i in st if i.text.startswith("v_add")]
        cv = [(i, max(where[r] for r in i.rd) + 1, last) for i in st if i.text.startswith("v_cvt")]
        if adds: self.place(adds)
        if cv: self.place(cv)
    def gap(self, g):
        if self.ex[g]: return self.sa[g] + self.ex[g] + self.va[g] + self.ds[g]
        return self.sa[g] + self.ds[g] + self.va[g]

def window(stream, lo, hi): return [(i, lo, hi) for i in stream]
def pack_items(i0, i1, step):
    out = []
    for ins in pack_stream(i0, i1):
        r = min(int(x[1:]) for x in ins.rd if int(x[1:]) >= O); i = (r - O) // 4
        out.append((ins, min(8 + i, NS - 1), NS - 1) if step == 0 else (ins, 0, 1 + i))
    return out

SM7_REST = []
NSITE = opt["nsite"]
def make_step(kt):
    S_ = Step(); sa, ds = S_.sa, S_.ds
    if STAMP and (not LB or STAMP == 3):
        cur, prev = (60, 62) if kt % 2 == 0 else (62, 60)
        sa[19] += stamp(cur, STAMP == 2)
        sa[19] += [raw(f"s_min_u32 s35, s{sTile}, 3"), raw(f"s_lshl_b32 s35, s35, 3"), raw(f"s_add_u32 m0, s35, {kt}"), raw("s_nop 0"), raw(f"s_movreld_b32 s64, s{prev}")]
        if kt == 0: sa[19] += stamp(4, True)
        if kt == 1: sa[19] += [raw(f"s_min_u32 m0, s{sTile}, 3"), raw("s_nop 0"), raw(f"s_movreld_b32 s98, s4")]
    if LB and STAMP != 3 and kt == 0:
        sa[19] += stamp(60) + [raw(f"s_mov_b32 m0, s{sTile}"), raw("s_nop 0"), raw(f"s_movreld_b32 s64, s62"), raw("s_nop 0")]
    if LB and STAMP != 3 and kt == 4:
        sa[19] += [raw("s_mov_b32 s62, s60")]
    if kt < NSITE: sa[21].append(Cond(a_sync(kt == NSITE - 1)))
    if not opt["xnolds"]:
        for g, l in frag_reads(kt).items(): ds[g] += l
    if opt["prio"] == 1:
        sa[1].append(raw(f"s_setprio {3 - (2 * kt) % 4}")); sa[17].append(raw(f"s_setprio {3 - (2 * kt + 1) % 4}"))
    if opt["prio"] == 2:
        for j, g in enumerate((1, 9, 17, 25)): sa[g].append(raw(f"s_setprio {3 - j}"))
    for i, (k2, g2) in enumerate(QLD_AT):
        if k2 == kt: ds[g2].append(q_loads(QR, s(sQoff))[i])
    for i, (k2, g2) in enumerate(OST_AT):
        if k2 == kt: ds[g2].append((o_stores(0) + o_stores(1))[i])
    if kt == 0:
        sa[11] += bad_update()[0]
        S_.softmax(0, True, [3, 5] + EGAPS[3:] + [33], NS - 1) if False else S_.softmax(0, True)
        S_.place(window(lred(), 4, 8))
        S_.place(pack_items(0, opt["pk0"], 0))
    elif kt == 1:
        for x, g in zip(o_writes(0), (6, 10, 14, 18)): ds[g] = x + ds[g]
        ds[20] += flat(o_reads(0))
        S_.softmax(1, False)
        S_.place(pack_items(opt["pk0"], 16, 1))
    elif kt == 2:
        for x, g in zip(o_writes(1), (4, 10, 14, 18)): ds[g] = x + ds[g]
        S_.softmax(0, False)
    elif kt == 3:
        for x, g in zip(o_reads(1), (4, 6, 10, 14)): ds[g] = x + ds[g]
        S_.softmax(1, False)
    elif kt == 5:
        sa[13] += [salu("s_add_u32", s(sQoff), s(sQoff), TSTRIDE)]
        sa[15] += [raw(f"s_cmp_ge_u32 s{sTile}, s{sCut}", "salu", rd=[s(sTile), s(sCut)]),
                   raw(f"s_cselect_b32 s{sQ+2}, 0, s{sQ+2}", "salu", rd=[s(sQ + 2)], wr=[s(sQ + 2)])]
        S_.softmax(1, False)
    elif kt == 6:
        for x, g in zip(q_writes(QR, 0), (10, 14, 18, 20)): ds[g] = x + ds[g]
        ds[33] += flat(q_reads(0))
        sa[23] += [salu("s_mov_b32", s(sO + 2), 0 if LB else QBYTES)]
        sa[25] += [salu("s_lshl_b32", s(sOoff), s(sTile), 15)]
        sa[27] += [salu("s_add_u32", s(sOoff), s(sOoff), s(sBase))]
        S_.softmax(0, False)
    elif kt == 7:
        for x, g in zip(q_writes(QR, 1), (0, 2, 4, 6)): ds[g] = x + ds[g]
        for x, g in zip(q_reads(1), (8, 10, 12, 12)): ds[g] = ds[g] + x
        S_.softmax(1, False)
        for g in range(18, NS): SM7_REST.extend(S_.ex[g] + S_.va[g])
        S_.place(window(max_first16(0) + max_finish(), 28, 33))
    else:
        S_.softmax(kt % 2, False)
    print(f"step {kt} model", sum(max(16, 8 + 4 * S_.load(g)) for g in range(NS)), "".join(str(S_.load(g)) for g in range(NS)), file=sys.stderr)
    seq = [label(f"L_seg{kt}")]
    for g in range(NS):
        if kt == 7 and g == 18:
            seq += [raw(f"s_cmp_eq_u32 s{sTile}, s{sLast}", "salu", rd=[s(sTile), s(sLast)]), raw("s_cbranch_scc1 L_seg8", "br"), "EXIT"]
        if g < 2: mf = l_mfma((kt - 1) % 2, g, kt == 1)
        elif g < 18: mf = pv_mfma((kt - 1) % 2, g - 2, kt == 1)
        else: mf = qk_mfma((kt + 1) % 2, g - 18, kt != 7)
        grp = WAITGRP.get(g)
        if grp: mf.also |= set(vr(FR + grp[0], grp[1]))
        seq.append(mf)
        seq += S_.gap(g)
    for x in opt["drop"].split(","):
        if x: seq = [i for i in seq if not (isinstance(i, I) and i.text.startswith(x))]
    return seq + wexit(kt % 2 == 1)

def flatten(seq, first=False, last=False):
    st, tr = [], []
    done = False
    def add(l, static=True):
        if static: st.extend(l)
        if not done: tr.extend(l)
    for x in seq:
        if x == "EXIT":
            if last: done = True
        elif isinstance(x, Cond):
            add(x.head[:1])
            if first: add(flatten(x.ool)[1], False)
            add(x.head[1:])
        elif isinstance(x, Guard):
            add(x.head + x.body + x.tail)
        elif isinstance(x, Call):
            add(x.head); add(kscale, False)
        else:
            add([x])
    return st, tr

pro = []
A = pro.append
def srd(reg, lo, nb):
    return [salu("s_mov_b32", s(reg), s(lo)), salu("s_and_b32", s(reg + 1), s(lo + 1), 0xffff),
            salu("s_mov_b32", s(reg + 2), nb), salu("s_mov_b32", s(reg + 3), 0x20000)]
A(raw("s_cmp_ge_u32 s2, 256", "salu", rd=["s2"]))
A(raw("s_cbranch_scc1 L_end", "br"))
A(raw("s_load_dwordx4 s[4:7], s[0:1], 0", "smem"))
A(raw("s_load_dwordx4 s[24:27], s[0:1], 16", "smem"))
tA, tB, tC, tD, vLane = SS, SS + 1, SS + 2, SS + 3, SS + 6
A(raw("s_getpc_b64 s[38:39]", "salu", wr=["s38", "s39"]))
A(label("L_pc"))
if opt["cpf"]:
    A(valu("v_lshlrev_b32", v(tC), 5, "v0"))
    A(raw(f"v_min_u32 v{tC}, L_slow-L_pc-32, v{tC}", "valu", rd=[v(tC)], wr=[v(tC)]))
    A(I(f"global_load_dwordx4 v[{SS+8}:{SS+11}], v{tC}, s[38:39]", "vld", rd=[v(tC), "s38", "s39"], wr=vr(SS + 8, 4)))
pro += stamp(44) + stamp(46, True)
A(valu("v_lshrrev_b32", v(tA), 6, "v0"))
A(valu("v_and_b32", v(vLane), 63, "v0"))
A(raw(f"v_readfirstlane_b32 s{sWave}, v{tA}", "rfl", rd=[v(tA)], wr=[s(sWave)]))
A(salu("s_lshr_b32", "s40", "s2", 4))
A(salu("s_lshl_b32", "s40", "s40", 3))
A(salu("s_and_b32", "s41", "s2", 7))
A(salu("s_add_u32", "s40", "s40", "s41"))
A(salu("s_bfe_u32", "s41", "s2", 0x10003))
A(salu("s_lshl_b32", s(sKV), "s40", 16))
A(salu("s_lshl1_add_u32", "s40", "s40", "s41"))
A(salu("s_lshl_b32", s(sBase), "s40", 18))
A(salu("s_and_b32", "s40", s(sWave), 3))
A(salu("s_lshl_b32", "s41", "s40", 13))
A(salu("s_add_u32", s(sBase), s(sBase), "s41"))
A(valu("v_lshrrev_b32", v(tA), 3, v(vLane)))
A(valu("v_and_b32", v(tB), 7, v(vLane)))
A(valu("v_lshlrev_b32", v(vG), 10, v(tA)))
A(valu("v_lshl_add_u32", v(vG), v(tB), 4, v(vG)))
A(valu("v_lshrrev_b32", v(tD), 4, v(vLane)))
A(salu("s_lshl_b32", "s42", "s40", 11))
A(valu("v_lshlrev_b32", v(vKd), 8, v(tB)))
A(valu("v_lshl_add_u32", v(vKd), v(tA), 4, v(vKd)))
A(valu("v_add_u32", v(vKd), "s42", v(vKd)))
A(salu("s_lshl_b32", "s41", "s40", 10))
A(raw(f"s_cmp_lt_u32 s{sWave}, 4", "salu", rd=[s(sWave)]))
A(raw("s_waitcnt lgkmcnt(0)", "fullwait"))
A(raw("s_cbranch_scc1 L_groupA", "br"))
pro_head = pro
proB0 = srd(sK, 6, KBYTES) + dma("K0") + dma("K1") + [raw("s_branch L_groupB", "br")]

def consts():
    c = []
    A = c.append
    c += srd(sO, 26, 0)
    A(salu("s_mov_b32", s(sThr), fbits(2.0 ** 30)))
    A(salu("s_lshl_b32", "s35", s(sWave), 12))
    A(salu("s_add_u32", "s35", "s35", LDS_SCR))
    A(valu("v_lshlrev_b32", v(tC), 1, v(tA)))
    A(valu("v_and_b32", v(tC), 7, v(tC)))
    A(valu("v_xor_b32", v(tC), v(tC), v(tB)))
    A(valu("v_lshlrev_b32", v(vRw), 9, v(tA)))
    A(valu("v_lshl_add_u32", v(vRw), v(tC), 4, v(vRw)))
    A(valu("v_add_u32", v(vRw), "s35", v(vRw)))
    A(valu("v_and_b32", v(tA), 15, v(vLane)))
    A(valu("v_bfe_u32", v(tC), v(vLane), 1, 3))
    A(valu("v_lshlrev_b32", v(vFr), 7, v(tA)))
    A(valu("v_add_u32", v(vFr), "s35", v(vFr)))
    A(valu("v_lshrrev_b32", v(tB), 5, v(vLane)))
    A(valu("v_xor_b32", v(tB), v(tB), v(tC)))
    A(valu("v_lshl_add_u32", v(vOw), v(tB), 4, v(vFr)))
    A(valu("v_and_b32", v(tB), 1, v(tD)))
    A(valu("v_lshl_add_u32", v(vOw), v(tB), 3, v(vOw)))
    A(valu("v_xor_b32", v(tC), v(tC), v(tD)))
    A(valu("v_lshl_add_u32", v(vFr), v(tC), 4, v(vFr)))
    for i in range(4): A(valu("v_mov_b32", v(ONES + i), 0x3f803f80))
    A(valu("v_lshrrev_b32", v(tC), 3, v(tA)))
    A(valu("v_lshlrev_b32", v(vK), 10, v(tC)))
    A(valu("v_and_b32", v(tC), 7, v(vLane)))
    A(valu("v_lshl_add_u32", v(vK), v(tC), 4, v(vK)))
    A(valu("v_lshl_add_u32", v(vK), v(tD), 7, v(vK)))
    A(valu("v_bfe_u32", v(tC), v(vLane), 2, 2))
    A(valu("v_mul_u32_u24", v(vV), 288, v(tC)))
    A(valu("v_lshl_add_u32", v(vV), v(tB), 7, v(vV)))
    A(valu("v_lshrrev_b32", v(tC), 5, v(vLane)))
    A(valu("v_lshl_add_u32", v(vV), v(tC), 11, v(vV)))
    A(valu("v_and_b32", v(tC), 3, v(vLane)))
    A(valu("v_lshl_add_u32", v(vV), v(tC), 3, v(vV)))
    A(valu("v_add_u32", v(vV), LDS_V, v(vV)))
    for t in range(1, 4):
        A(valu("v_xor_b32", v(vV + t), t * 32, v(vV)))
    A(salu("s_add_u32", s(sQoff), s(sBase), TSTRIDE))
    A(salu("s_mov_b32", s(sOoff), s(sBase)))
    A(salu("s_mov_b32", s(sTile), 0))
    A(salu("s_mov_b32", s(sBad), 0))
    return c

proA = [label("L_groupA")] + srd(sQ, 4, QBYTES) + q_loads(T, s(sBase)) + stamp(56)
proA += [salu("s_mov_b32", s(sLast), NA - 1), salu("s_mov_b32", s(sCut), 0 if LB else NA - 2),
         raw("s_mov_b64 vcc, -1", "salu", wr=["vcc"])]
proA += consts()
proA += flat(q_writes(T, 0) + q_reads(0) + q_writes(T, 1) + q_reads(1))
proA += q_loads(QR, s(sQoff))[:2]
proA += [raw("s_barrier", "bar")]
proC = [label("L_start")] + stamp(62, STAMP == 2)
for kb in range(2):
    for ds_ in range(4): proC += kfrag(0, kb, ds_)
mx = max_first16(0) + max_finish()
for m in range(16):
    proC.append(qk_mfma(0, m, False))
    if m >= 10: proC += mx[(m - 10) * 2:(m - 10) * 2 + 2]
proC += mx[12:]
proB = [label("L_groupB")]
A = proB.append
A(salu("s_add_u32", s(sBase), s(sBase), 5 * TSTRIDE if LB else NA * TSTRIDE))
proB += dma("K2")
A(salu("s_lshr_b32", "s35", "s40", 1))
A(salu("s_and_b32", "s42", "s40", 1))
A(salu("s_lshl_b32", "s35", "s35", 11))
A(salu("s_lshl_b32", "s42", "s42", 7))
A(salu("s_add_u32", "s35", "s35", "s42"))
A(valu("v_and_b32", v(tC), 1, v(tA)))
A(valu("v_lshl_add_u32", v(tC), v(tC), 2, v(tD)))
A(valu("v_lshlrev_b32", v(vVd), 8, v(tC)))
A(valu("v_lshrrev_b32", v(tC), 1, v(tB)))
A(valu("v_xor_b32", v(tC), v(tC), v(tD)))
A(valu("v_lshl_add_u32", v(vVd), v(tC), 5, v(vVd)))
A(valu("v_and_b32", v(tC), 1, v(vLane)))
A(valu("v_lshl_add_u32", v(vVd), v(tC), 4, v(vVd)))
A(valu("v_add_u32", v(vVd), "s35", v(vVd)))
proB += srd(sV, 24, KBYTES)
proB += dma("V0")
for t in ["K3", "V1", "K4", "V2", "K5", "V3"][:opt["up"] - 4]: proB += dma(t)
proB += stamp(56)
proB += srd(sQ, 4, QBYTES)
A(salu("s_mov_b32", s(sC), fbits(math.log2(math.e) / math.sqrt(128.0))))
A(raw(f"s_add_u32 s{sSub}, s38, L_kscale-L_pc", "salu", rd=["s38"], wr=[s(sSub)]))
A(raw(f"s_addc_u32 s{sSub+1}, s39, 0", "salu", rd=["s39"], wr=[s(sSub + 1)]))
A(valu("v_lshl_add_u32", v(vKs), v(vLane), 4, "s41"))
A(valu("v_mov_b32", v(vKd + 2), v(vLane)))
proB += [salu("s_mov_b32", s(sLast), NB - 1), salu("s_mov_b32", s(sCut), 0 if LB else NB - 2), raw("s_mov_b64 vcc, 0", "salu", wr=["vcc"])]
proB += consts()
if opt["warm"]:
    A(salu("s_mov_b32", s(sQ + 2), 0))
    A(raw("s_mov_b64 exec, 0", "salu", wr=["exec"]))
    for k in range(4):
        A(raw(f"s_cmp_eq_u32 s40, {k}", "salu", rd=["s40"]))
        A(raw(f"s_cbranch_scc1 L_seg{2*k}", "br"))
    A(label("L_warm_ret"))
    A(raw("s_mov_b64 exec, -1", "salu", wr=["exec"]))
    A(raw("s_setprio 0", "salu"))
    A(salu("s_mov_b32", s(sQ + 2), QBYTES))
    A(salu("s_mov_b32", s(sO + 2), 0))
    A(salu("s_add_u32", s(sQoff), s(sBase), TSTRIDE))
    A(salu("s_mov_b32", s(sOoff), s(sBase)))
    A(salu("s_mov_b32", s(sBad), 0))
    A(valu("v_lshl_add_u32", v(vKs), v(vKd + 2), 4, "s41"))
_bn = [0]
def lg0():
    return raw("s_waitcnt lgkmcnt(0)", "fullwait")
def bar():
    if STAMP and not LB:
        _bn[0] += 1
        return raw(f"s_memtime s[60:61]\n    s_waitcnt lgkmcnt(0)\n    s_mov_b32 s{88 + _bn[0]}, s60\n    s_barrier", "bar")
    return raw("s_barrier", "bar")
ORD = ["K0", "K1", "K2", "V0", "K3", "V1", "K4", "V2", "K5", "V3", "K6", "V4", "K7", "V5", "V6", "V7"]
UP, MID = opt["up"], opt["mid"]
proB += [wait_vm("K0"), Call(), wait_vm("K1"), Call(), lg0(), bar()]
q0 = q_loads(T, s(sBase))
units = [dma(t) for t in ORD[UP:]] + [q0[:2], q0[2:4], q0[4:6], q0[6:], q_loads(QR, s(sQoff))[:2]]
proB += flat(units[:MID]); units = units[MID:]
later = []
while units:
    n = opt["per"] if len(later) < NSITE - 1 else len(units)
    later.append(flat(units[:n])); units = units[n:]
assert len(later) <= NSITE
for site in range(NSITE):
    ks = [site + 2] if site < NSITE - 1 else list(range(site + 2, 8))
    for k in ks:
        if k <= 7: proB += [wait_vm(f"K{k}"), Call()]
    proB += [wait_vm(f"V{site if site < NSITE - 1 else 7}"), lg0(), bar()]
    if site < len(later): proB += later[site]
proB += flat(q_writes(T, 0) + q_reads(0) + q_writes(T, 1) + q_reads(1))
proB += [raw("s_branch " + ("L_end" if LB == 1 else "L_start"), "br")]
proA_st, proA_tr = flatten(proA + proC)
proB_st, proB_tr = flatten(proB)

steps = []
for kt in range(8):
    steps += make_step(kt)
steps += [salu("s_add_u32", s(sTile), s(sTile), 1)]
steps += [raw("s_branch L_seg0", "br")]
body_st, body_tr0 = flatten(steps, first=True)
body_tr = flatten(steps)[1]
body_trl = flatten(steps, last=True)[1]

import copy
tail = [label("L_seg8")]
tail += stamp(58, STAMP == 2)
for dt in range(8): tail += vfrag(7, dt)
tail += [copy.copy(x) for x in SM7_REST]
tail += [l_mfma(1, 0, False), l_mfma(1, 1, False)]
pv = [pv_mfma(1, m, False) for m in range(16)]
pk = pack_stream(0, 8)
tail += pv[:4] + lred() + pv[4:6]
for m in range(6, 16):
    tail += [pv[m]] + pk[(m - 6) * 5:(m - 5) * 5]
tail += bad_update()[0] + flat(o_writes(0) + o_reads(0)) + pack_stream(8, 12) + o_stores(0)[:2] + pack_stream(12, 16) + o_stores(0)[2:]
tail += flat(o_writes(1) + o_reads(1)) + o_stores(1)
if STAMP:
    tail += [raw("s_waitcnt vmcnt(0) lgkmcnt(0)", "fullwait")] + stamp(24) + stamp(26, True)
    tail += [raw("s_load_dwordx2 s[6:7], s[0:1], 40", "smem"), raw("s_waitcnt lgkmcnt(0)", "fullwait"),
             raw("s_mov_b32 s96, s62"),
             raw("s_mov_b32 s8, s6"), raw("s_and_b32 s9, s7, 0xffff"), raw("s_mov_b32 s10, 0x10000000"), raw("s_mov_b32 s11, 0x20000"),
             raw(f"s_lshl_b32 s35, s2, 3"), raw(f"s_add_u32 s35, s35, s{sWave}"), raw("s_mul_i32 s35, s35, 192"),
             raw("s_getreg_b32 s97, hwreg(HW_REG_HW_ID)"), raw("v_mov_b32 v32, 0", "valu")]
    regs = [44, 46, 56, 56, 58, 58, 24, 26] + list(range(64, 102))
    for i, r in enumerate(regs):
        tail += [raw(f"v_mov_b32 v33, s{r}", "valu"), raw(f"buffer_store_dword v33, v32, s[8:11], s35 offen offset:{4*i}", "vst"), raw("s_nop 1")]
tail += [salu("s_lshl_b32", "s41", 1, s(sLast)), salu("s_lshl_b32", "s40", "s41", 1), salu("s_sub_u32", "s40", "s40", 1),
         salu("s_and_b32", s(sBad), s(sBad), "s40"), raw("s_cbranch_scc1 " + ("L_end" if BROKEN or STAMP else "L_slow"), "br"),
         label("L_end"), raw("s_endpgm", "br")]
ool = []
for c in Cond.blocks: ool += flatten(c.ool)[0]
ool += kscale

vD, vD1, vKa, vVa = T, T + 1, T + 2, T + 4
slow_pre = [label("L_slow"), raw("s_waitcnt vmcnt(0) lgkmcnt(0)", "fullwait"),
            salu("s_mov_b32", s(sQ + 2), QBYTES),
            raw(f"v_mbcnt_lo_u32_b32 v{vD}, -1, 0", "valu", wr=[v(vD)]),
            raw(f"v_mbcnt_hi_u32_b32 v{vD}, -1, v{vD}", "valu", rd=[v(vD)], wr=[v(vD)]),
            valu("v_lshrrev_b32", v(vX), 4, v(vD)),
            valu("v_and_b32", v(vD), 15, v(vD)),
            valu("v_lshlrev_b32", v(vD), 8, v(vD)),
            valu("v_lshl_add_u32", v(vD1), v(vX), 3, v(vD)),
            valu("v_lshl_add_u32", v(vD), v(vX), 4, v(vD)),
            salu("s_mov_b32", "s40", s(sBase))]
st_head = [label("L_slow_tile"),
           raw(f"s_and_b32 s42, s{sBad}, s41", "salu", rd=[s(sBad), "s41"], wr=["s42"]),
           raw("s_cbranch_scc0 L_slow_next", "br")]
st_a = [salu("s_add_u32", "s39", "s40", 4096)]
st_a += [buf_load(Qreg(qb, ds_), 4, vD, sQ, ("s40", "s39")[qb], ds_ * 64) for qb in range(2) for ds_ in range(4)]
st_a += [valu("v_mov_b32", v(vMa), 0xff800000), valu("v_mov_b32", v(vMb), 0xff800000),
         valu("v_mov_b32", v(vKa), v(vK)), salu("s_mov_b32", "s35", 0)]
def slow_qk(shifted):
    o = []
    for kb in range(2):
        for ds_ in range(4): o += kfrag(0, kb, ds_, vKa)
    return o + [qk_mfma(0, m, shifted) for m in range(16)]
def slow_loop(lbl):
    return [salu("s_add_u32", "s35", "s35", 1), raw("s_cmp_lt_u32 s35, 8", "salu", rd=["s35"]), raw(f"s_cbranch_scc1 {lbl}", "br")]
p1 = [label("L_slow_p1")] + slow_qk(False)
for i in range(0, 8, 2):
    for qb in range(2):
        p1.append(valu("v_max3_f32", v((vMa, vMb)[qb]), v((vMa, vMb)[qb]), v(SS + 8 * qb + i), v(SS + 8 * qb + i + 1)))
p1 += [valu("v_add_u32", v(vKa), 8192, v(vKa))] + slow_loop("L_slow_p1")
st_b = max_finish() + [valu("v_mov_b32", v(vL + i), 0) for i in range(8)] + [valu("v_mov_b32", v(vKa), v(vK)),
                       salu("s_mov_b32", "s35", 0)]
st_b += [valu("v_mov_b32", v(vVa + t), v(vV + t)) for t in range(4)]
st_b += [valu("v_mov_b32", v(O + i), 0) for i in range(64)]
p2 = [label("L_slow_p2")] + slow_qk(True)
for dt in range(8): p2 += vfrag(0, dt, vVa)
p2 += softmax_stream(0, False) + [l_mfma(0, 0, False), l_mfma(0, 1, False)] + [pv_mfma(0, m, False) for m in range(16)]
p2 += [valu("v_add_u32", v(vKa), 8192, v(vKa))] + [valu("v_add_u32", v(vVa + t), 8192, v(vVa + t)) for t in range(4)]
p2 += slow_loop("L_slow_p2")
st_c = lred(check=False) + pack_stream(0, 16, QR)
for i in range(16):
    st_c.append(buf_store(QR + 2 * i, 2, vD1, sO, ("s40", "s39")[i & 1], 32 * (i >> 1)))
st_next = [label("L_slow_next"), salu("s_add_u32", "s40", "s40", TSTRIDE), salu("s_lshr_b32", "s41", "s41", 1),
           raw("s_cbranch_scc1 L_slow_tile", "br"), raw("s_endpgm", "br")]
slow = slow_pre + st_head + st_a + p1 + st_b + p2 + st_c + st_next

one = st_head + st_a + p1 + p1 + p1 + st_b + p2 + p2 + p2 + st_c + st_next
trA = pro_head + proA_tr + body_tr0 + body_tr + body_tr + body_trl + tail + slow_pre + one + one
trB = pro_head + proB0 + proB_tr + proC + body_tr + body_tr + body_trl + tail
for _ in range(2):
    analyze_waits(trA); analyze_waits(trB)
analyze_hazards(trA); analyze_hazards(trB); analyze_hazards(trA)
prog = pro_head + proB0 + proA_st + body_st + tail + ool + proB_st + slow

hdr = """; GQA attention, B32 Hq32 Hkv4 Sq256 Sk256 D128 bf16.  Generated by my own generator script (gen21.py).
; @launch grid=(256,1,1) block=(512,1,1) lds=163840
.amdgcn_target "amdgcn-amd-amdhsa--gfx950"
.text
.globl standalone__gqa_softmax__near_ridge_kernel
.p2align 8
.type standalone__gqa_softmax__near_ridge_kernel,@function
standalone__gqa_softmax__near_ridge_kernel:
"""
ftr = """
.section .rodata,"a"
.p2align 6
.amdhsa_kernel standalone__gqa_softmax__near_ridge_kernel
  .amdhsa_next_free_vgpr 256
  .amdhsa_next_free_sgpr 102
  .amdhsa_accum_offset 256
  .amdhsa_group_segment_fixed_size 0
  .amdhsa_kernarg_size 48
  .amdhsa_user_sgpr_count 2
  .amdhsa_user_sgpr_kernarg_segment_ptr 1
  .amdhsa_system_sgpr_workgroup_id_x 1
.end_amdhsa_kernel
"""
body = emit(prog)
if opt['al']: body = align_pass(body, opt['al'])
print(hdr + body + ftr)
```

```python
import sys, struct, math
from asmlib import *

opt = dict(qf="nt", kvf="", of="sc1", prio=3, stamp=0, warm=0, cpf=1, xsm="", xnolds=0, early=1, nsite=8, na=5, pk0=5, pks=14, al=0, up=4, mid=4, per=2, lbm=0, qsite=-1, bprio=0, sites="01234567", q0at=4, xq1=0, lb=0, drop="")
for a in sys.argv[1:]:
    k, v = a.split("=")
    opt[k] = int(v) if v.lstrip("-").isdigit() and k != "sites" else v.replace("+", " ")
QF, KVF, OF = opt["qf"], opt["kvf"], opt["of"]
BROKEN = bool(opt["xsm"] or opt["xnolds"])

def fbits(x): return struct.unpack("<I", struct.pack("<f", x))[0]

vX, vK, vV, vFr, vGo, vQd, vMa, vMb, ONES, NM, vL = 0, 1, 2, 6, 7, 8, 10, 11, 12, 16, 24
vRw, vG, vFr1 = 112, 113, 114
QN = 96
sScr = 47
vKs, vVr, vVw = vL, vL + 1, vL + 2
FR, QC, QR, T, SS, O = 32, 64, 96, 128, 160, 192
sQ, sK, sV, sO = 8, 12, 16, 20
sC, sThr, sTile, sQoff, sOoff, sBad, sWave, sBase, sKV = 28, 29, 30, 31, 32, 33, 34, 36, 37
sSubKV = 100
sRet, sSub, sSubV, sChk, sLast, sCut, sOoff2 = 52, 54, 50, 48, 43, 38, 39
QBYTES, KBYTES = 64 << 20, 8 << 20
LDS_V, LDS_SCR = 65536, 131072
NS = 34
TSTRIDE = 32768
NA = opt['na']; NB = 8 - NA
LB = opt['lb']
if LB: NA = NB = 24; BROKEN = True
if 0: pass

def v(n): return f"v{n}"
def s(n): return f"s{n}"
def Sreg(sb, kb, qb): return SS + 16 * sb + 8 * qb + 4 * kb
def Preg(sb, qb): return SS + 16 * sb + 8 * qb
def Oreg(dt, qb): return O + (dt * 2 + qb) * 4
def Qreg(qb, ds): return QC + (qb * 4 + ds) * 4

def kfrag(kt, kb, ds, addr=vK):
    return [ds_read(FR + 4 * (4 * kb + ds), 4, addr, kt * 8192 + (ds >> 1) * 4096 + kb * 2048 + (ds & 1) * 512)]
def vfrag(kt, dt, addr=vV):
    o = kt * 8192 + (dt >> 2) * 1024
    return [ds_read(FR + 4 * dt, 2, addr + (dt & 3), o, tr=True),
            ds_read(FR + 4 * dt + 2, 2, addr + (dt & 3), o + 4096, tr=True)]
def qk_mfma(sb, m, shifted):
    kb, qb, ds = m >> 3, (m >> 2) & 1, m & 3
    d = Sreg(sb, kb, qb)
    c = d if ds else (NM + 4 * qb if shifted else None)
    return mfma16(d, FR + 4 * (4 * kb + ds), Qreg(qb, ds), c)
def pv_mfma(sb, m, first):
    dt, qb = m >> 1, m & 1
    return mfma16(Oreg(dt, qb), Preg(sb, qb), FR + 4 * dt, None if first else Oreg(dt, qb))

def l_mfma(sb, qb, first):
    return mfma16(vL + 4 * qb, Preg(sb, qb), ONES, None if first else vL + 4 * qb)

def softmax_stream(sb, first):
    pairs = [(kb, qb, h) for kb in range(2) for qb in range(2) for h in range(2)]
    out = []; seen = set()
    lag = 1 if first else 0
    for p in range(8 + 1 + lag):
        if first and p < 8:
            kb, qb, h = pairs[p]; r = Sreg(sb, kb, qb) + 2 * h
            out.append(valu("v_add_f32", v(r), v(r), v(NM + 4 * qb)))
            out.append(valu("v_add_f32", v(r + 1), v(r + 1), v(NM + 4 * qb)))
        if lag <= p < 8 + lag:
            kb, qb, h = pairs[p - lag]; r = Sreg(sb, kb, qb) + 2 * h
            out.append(trans("v_exp_f32", v(r), v(r)))
            out.append(trans("v_exp_f32", v(r + 1), v(r + 1)))
        if p >= 1 + lag:
            kb, qb, h = pairs[p - 1 - lag]; r = Sreg(sb, kb, qb) + 2 * h
            out.append(valu("v_cvt_pk_bf16_f32", v(Preg(sb, qb) + 2 * kb + h), v(r), v(r + 1)))
    for x in opt["xsm"].split(","):
        if x: out = [i for i in out if not i.text.startswith(x)]
    return out

def xreduce(op, a, b, ra, rb):
    return [permswap(a, b), valu(op, v(ra), v(a), v(b)), valu("v_mov_b32", v(rb), v(ra)),
            permswap16(ra, rb), valu(op, v(ra), v(ra), v(rb)), valu("v_mov_b32", v(rb), v(ra)),
            permswap(ra, rb)]
def max_first16(sb):
    a, b = Sreg(sb, 0, 0), Sreg(sb, 0, 1)
    return [valu("v_max3_f32", v(vMa), v(a), v(a + 1), v(a + 2)), valu("v_max_f32", v(vMa), v(vMa), v(a + 3)),
            valu("v_max3_f32", v(vMb), v(b), v(b + 1), v(b + 2)), valu("v_max_f32", v(vMb), v(vMb), v(b + 3))]
def max_finish():
    return xreduce("v_max_f32", vMa, vMb, vMa, vMb) + \
        [valu("v_sub_f32", v(NM + i), 0, v((vMa, vMb)[i >> 2])) for i in range(8)]
def lred(check=True):
    chk = [valu("v_max3_f32", v(vX), v(vL), v(vL + 1), v(vL + 2)), valu("v_max3_f32", v(vX), v(vX), v(vL + 3), v(vL + 4)),
           valu("v_max3_f32", v(vX), v(vX), v(vL + 5), v(vL + 6)), valu("v_max_f32", v(vX), v(vX), v(vL + 7)),
           raw(f"v_cmp_nge_f32_e64 s[{sChk}:{sChk+1}], s{sThr}, v{vX}", "valu", rd=[s(sThr), v(vX)], wr=sr(sChk, 2))] if check else []
    return chk + [trans("v_rcp_f32", v(vL + i), v(vL + i)) for i in range(8)]
def bad_update():
    return [[raw(f"s_cmp_lg_u64 s[{sChk}:{sChk+1}], 0", "salu", rd=sr(sChk, 2)),
             raw(f"s_addc_u32 s{sBad}, s{sBad}, s{sBad}", "salu", rd=[s(sBad)], wr=[s(sBad)])]]

def pack_stream(u0, u1, dst=T):
    out = []; pend = []
    for u in range(u0, u1):
        j, qb = u >> 1, u & 1
        a, b = Oreg(2 * j, qb), Oreg(2 * j + 1, qb)
        for r in range(4):
            out.append(valu("v_mul_f32", v(a + r), v(a + r), v(vL + 4 * qb + r)))
            out.append(valu("v_mul_f32", v(b + r), v(b + r), v(vL + 4 * qb + r)))
            out += pend
            pend = [valu("v_cvt_pk_bf16_f32", v(dst + 16 * qb + 4 * r + j), v(a + r), v(b + r))]
    return out + pend

def xaddr(base, x):
    if x == 0: return [], base
    return [valu("v_xor_b32", v(vX), x, v(base))], vX
def o_stores(src=T, so=None):
    so = so or (s(sOoff), s(sOoff2))
    return [buf_store(src + 16 * qb + 4 * r, 4, vGo, sO, so[qb], r * 256, OF) for qb in range(2) for r in range(4)]
def q_writes(src, half):
    pre, a = xaddr(vRw, 16)
    return [[ds_write(vRw, src + 16 * half, 4, 0)], [ds_write(vRw, src + 16 * half + 4, 4, 128)],
            pre + [ds_write(a, src + 16 * half + 8, 4, 256)], [ds_write(a, src + 16 * half + 12, 4, 384)]]
def q_reads(half, dst=None):
    d = lambda qb, x: Qreg(qb, 2 * half + x) if dst is None else dst + 8 * qb + 4 * x
    return [[ds_read(d(qb, x), 4, (vFr, vFr1)[x], 2048 * qb)] for x in range(2) for qb in range(2)]
def q_dma(half, j, after=()):
    i = buf_load_lds(vQd + (j & 1), sQ, "s42", 0, QF, tag=f"QH{half}")
    i.also |= set(after)
    return [salu("s_add_u32", "m0", s(sScr), 1024 * j), salu("s_add_u32", "s42", s(sQoff), 2048 * j + 128 * half)], i
def q_movs():
    return [valu("v_mov_b32", v(Qreg(qb, 0) + i), v(QN + 8 * qb + i)) for qb in range(2) for i in range(8)]
def flat(ll): return [x for l in ll for x in l]
def q_loads(dst, soff):
    return [buf_load(dst + 16 * half + 4 * j, 4, vG, sQ, soff, j * 256 + half * 128, QF)
            for half in range(2) for j in range(4)]

class Cond:
    blocks = []
    def __init__(self, body):
        n = len(Cond.blocks)
        self.head = [raw(f"s_cbranch_vccnz L_sync{n}", "br"), label(f"L_back{n}")]
        self.ool = [label(f"L_sync{n}")] + body + [raw(f"s_branch L_back{n}", "br")]
        Cond.blocks.append(self)
class Guard:
    n = 0
    def __init__(self, body):
        Guard.n += 1
        on = bool(opt["warm"])
        self.head = [raw(f"s_cbranch_execz L_g{Guard.n}", "br")] if on else []
        self.body = body
        self.tail = [label(f"L_g{Guard.n}")] if on else []
class Call:
    def __init__(self, isv=False):
        self.isv = isv
        t = {False: sSub, True: sSubV, 2: sSubKV}[isv]
        self.head = [raw(f"s_swappc_b64 s[{sRet}:{sRet+1}], s[{t}:{t+1}]", "br")]
def wexit(on=True):
    return [raw("s_cbranch_execz L_warm_ret", "br")] if opt["warm"] and on else []

def spread(gaps, stream, g0, g1):
    n = g1 - g0 + 1
    for i, ins in enumerate(stream):
        g = gaps[g0 + (i * n) // len(stream)]
        if isinstance(ins, list): g += ins
        else: g.append(ins)

vKd, vVd = QR + 28, QR + 29
def dma(tag):
    kt = int(tag[1]); isv = tag[0] == "V"
    out = []
    for h in range(2):
        if isv:
            out += [salu("s_add_u32", "m0", "s45", kt * 8192 + h * 1024 + LDS_V),
                    salu("s_add_u32", "s42", "s44", kt * 8192 + h * 1024),
                    buf_load_lds(vVd, sV, "s42", 0, KVF, tag=tag)]
        else:
            out += [salu("s_add_u32", "m0", "s41", kt * 8192 + h * 4096),
                    salu("s_add_u32", "s42", s(sKV), kt * 8192 + h * 128),
                    buf_load_lds(vKd, sK, "s42", 0, KVF, tag=tag)]
    return out
def a_sync(last):
    return [raw("s_barrier", "bar")] + ([raw("s_mov_b64 vcc, 0", "salu", wr=["vcc"])] if last else [])

KT = O
kscale = [label("L_kscale"), ds_read(KT, 4, vKs, 0), ds_read(KT + 4, 4, vKs, 4096)]
for i in range(8):
    kscale += [valu("v_lshlrev_b32", v(KT + 8 + (i & 3)), 16, v(KT + i)),
               valu("v_and_b32", v(KT + i), 0xffff0000, v(KT + i)),
               valu("v_mul_f32", v(KT + 8 + (i & 3)), s(sC), v(KT + 8 + (i & 3))),
               valu("v_mul_f32", v(KT + i), s(sC), v(KT + i)),
               valu("v_cvt_pk_bf16_f32", v(KT + i), v(KT + 8 + (i & 3)), v(KT + i))]
    if i == 3: kscale.append(ds_write(vKs, KT, 4, 0))
kscale += [ds_write(vKs, KT + 4, 4, 4096), valu("v_add_u32", v(vKs), 8192, v(vKs)),
           raw(f"s_setpc_b64 s[{sRet}:{sRet+1}]", "br")]

VT = O + 16
vrelay = [label("L_vrelay")] + [ds_read(VT + 2 * j, 2, vVr, 512 * j, tr=True) for j in range(4)]
vw = [ds_write(vVw + (j & 1), VT + 2 * j, 2, 128 * (j >> 1)) for j in range(4)]
vw[0].also |= set(vr(VT, 8))
vrelay += vw + [valu("v_add_u32", v(vVr), 8192, v(vVr)), valu("v_add_u32", v(vVw), 8192, v(vVw)),
                valu("v_add_u32", v(vVw + 1), 8192, v(vVw + 1)), raw(f"s_setpc_b64 s[{sRet}:{sRet+1}]", "br")]

def _cp(l):
    import copy
    out = []
    for x in l:
        y = copy.copy(x); y.also = set(x.also); out.append(y)
    return out
kvsub = [label("L_kv")] + _cp(vrelay[1:5]) + _cp(kscale[1:3]) + _cp(vrelay[5:12]) + _cp(kscale[3:])

STAMP = opt["stamp"]
def stamp(reg, real=False):
    return [raw(f"s_mem{'real' if real else ''}time s[{reg}:{reg+1}]", "smem")] if STAMP else []

def frag_reads(kt):
    k1, vp = (kt + 1) % 8, (kt - 1) % 8
    r = {0: vfrag(vp, 6), 2: vfrag(vp, 7)}
    for g, (kb, ds_) in zip(range(4, 20, 2), [(kb, d) for kb in range(2) for d in range(4)]):
        r[g] = kfrag(k1, kb, ds_)
    for dt in range(6): r[22 + 2 * dt] = vfrag(kt, dt)
    return r
QD_AT = [(7, 14), (7, 16), (7, 20), (7, 33), (2, 33), (3, 6), (3, 14), (3, 20)]
OST_AT = [(1, 20), (1, 33), (2, 6), (4, 6), (4, 20), (5, 6), (5, 20), (6, 6)]
WAITGRP = {0: (0, 16), 9: (16, 16), 17: (0, 16), 26: (16, 16)}
EGAPS = list(range(1, 33, 2))

def cost(i):
    if isinstance(i, Cond): return 0
    if isinstance(i, Guard): return sum(cost(x) for x in i.body)
    return {"trans": 2, "perm": 2, "dsw": 4, "vld": 2, "dma": 2, "vst": 3, "salu": 0, "smem": 0, "waitvm": 1}.get(i.kind, 1)

class Step:
    def __init__(self):
        self.sa = [[] for _ in range(NS)]
        self.ex = [[] for _ in range(NS)]
        self.ds = [[] for _ in range(NS)]
        self.va = [[] for _ in range(NS)]
    def load(self, g):
        n = sum(cost(i) for l in (self.ex[g], self.ds[g], self.va[g]) for i in l)
        n += max(0, len(self.sa[g]) - 1) + (1 if (g + 1) % NS in WAITGRP else 0)
        if self.ex[g] and self.ds[g]: n += 2
        return n
    def place(self, items):
        import functools
        base = [self.load(g) for g in range(NS)]
        pen = lambda x: 10 * max(0, x - 2) ** 2 + x * x * 0.01
        @functools.lru_cache(None)
        def best(k, g, add):
            if k == len(items): return (pen(base[g] + add) - pen(base[g]), ())
            ins, lo, hi = items[k]
            res = (1e18, ())
            if lo <= g <= hi:
                c, p = best(k + 1, g, add + cost(ins)); res = (c, (g,) + p)
            if g < hi:
                c, p = best(k, g + 1, 0); c += pen(base[g] + add) - pen(base[g])
                if c < res[0] - 1e-9: res = (c, p)
            return res
        c, pl = best(0, items[0][1], 0)
        assert c < 1e17
        for (ins, _, _), g in zip(items, pl): self.va[g].append(ins)
    def softmax(self, sb, first, egaps=EGAPS, last=NS - 1):
        st = softmax_stream(sb, first)
        ex = [i for i in st if i.kind == "trans"]
        where = {}
        for i, g in zip(ex, egaps):
            self.ex[g].append(i); where[next(iter(i.wr))] = g
        adds = [(i, 0, where[next(iter(i.wr))] - 1) for i in st if i.text.startswith("v_add")]
        cv = [(i, max(where[r] for r in i.rd) + 1, last) for i in st if i.text.startswith("v_cvt")]
        if adds: self.place(adds)
        if cv: self.place(cv)
    def gap(self, g):
        if self.ex[g]: return self.sa[g] + self.ex[g] + self.va[g] + self.ds[g]
        return self.sa[g] + self.ds[g] + self.va[g]

def window(stream, lo, hi): return [(i, lo, hi) for i in stream]
def pack_items(u0, u1, step):
    out = []
    for ins in pack_stream(u0, u1):
        acc = [(int(x[1:]) - O) // 4 for x in ins.rd if int(x[1:]) >= O]
        out.append((ins, max(min(8 + max(acc), NS - 1), opt["pks"]), NS - 1) if step == 0 else (ins, 0, min(acc) - 1))
    return out

SM7_REST = []
SITES = [int(c) for c in str(opt["sites"]).zfill(1)]
def make_step(kt):
    S_ = Step(); sa, ds = S_.sa, S_.ds
    if STAMP and (not LB or STAMP == 3):
        cur, prev = (60, 62) if kt % 2 == 0 else (62, 60)
        sa[19] += stamp(cur, STAMP == 2)
        sa[19] += [raw(f"s_min_u32 s35, s{sTile}, 3"), raw(f"s_lshl_b32 s35, s35, 3"), raw(f"s_add_u32 m0, s35, {kt}"), raw("s_nop 0"), raw(f"s_movreld_b32 s64, s{prev}")]
        if kt == 0: sa[19] += stamp(4, True)
        if kt == 1: sa[19] += [raw(f"s_min_u32 m0, s{sTile}, 3"), raw("s_nop 0"), raw(f"s_movreld_b32 s98, s4")]
    if LB and STAMP != 3 and kt == 0:
        sa[19] += stamp(60, STAMP == 2) + [raw(f"s_mov_b32 m0, s{sTile}"), raw("s_nop 0"), raw(f"s_movreld_b32 s64, s62"), raw("s_nop 0")]
    if LB and STAMP != 3 and kt == 4:
        sa[19] += [raw("s_mov_b32 s62, s60")]
    if kt in SITES:
        extra = [salu("s_mov_b32", s(sQ + 2), QBYTES)] if opt["xq1"] and kt == 6 else []
        sa[21].append(Cond(a_sync(kt == SITES[-1]) + extra))
    if not opt["xnolds"]:
        for g, l in frag_reads(kt).items(): ds[g] += l
    if opt["prio"] == 1:
        sa[1].append(raw(f"s_setprio {3 - (2 * kt) % 4}")); sa[17].append(raw(f"s_setprio {3 - (2 * kt + 1) % 4}"))
    if opt["prio"] == 3:
        if kt == 7: sa[27].append(raw("s_setprio 0"))
        if kt == 1: sa[19].append(raw("s_setprio 2"))
    if opt["prio"] == 4:
        if kt == 6: sa[9].append(raw("s_setprio 0"))
        if kt == 2: sa[19].append(raw("s_setprio 2"))
    if opt["prio"] == 5:
        lv = {0: 0, 1: 0, 2: 3, 3: 3, 4: 2, 5: 2, 6: 1, 7: 1}
        if kt % 2 == 0: sa[1].append(raw(f"s_setprio {lv[kt]}"))
    if opt["prio"] == 2:
        for j, g in enumerate((1, 9, 17, 25)): sa[g].append(raw(f"s_setprio {3 - j}"))
    for i, (k2, g2) in enumerate(QD_AT):
        if k2 == kt:
            after = () if i & 3 else (vr(QN, 16) if i == 4 else [r for qb in range(2) for r in vr(Qreg(qb, 2), 8)])
            pre, ld = q_dma(i >> 2, i & 3, after)
            sa[g2 - 1] += pre[:1]; sa[g2] += pre[1:]; ds[g2].append(ld)
    for i, (k2, g2) in enumerate(OST_AT):
        if k2 == kt: ds[g2].append(o_stores()[i])
    if kt == 0:
        sa[13] += bad_update()[0]
        S_.softmax(0, True)
        S_.place(window(lred(), 4, opt["pks"] - 1))
        S_.place(pack_items(0, opt["pk0"], 0))
    elif kt == 1:
        S_.softmax(1, False)
        S_.place(pack_items(opt["pk0"], 8, 1))
    elif kt == 2:
        rd = q_reads(0, QN)
        ds[14] += [wait_vm("QH0")] + rd[0]; ds[18] += rd[1]; ds[20] += rd[2] + rd[3]
        S_.softmax(0, False)
    elif kt == 5:
        sa[13] += [salu("s_add_u32", s(sQoff), s(sQoff), 0 if LB else TSTRIDE)]
        sa[15] += [raw(f"s_cmp_ge_u32 s{sTile}, s{sCut}", "salu", rd=[s(sTile), s(sCut)]),
                   raw(f"s_cselect_b32 s{sQ+2}, 0, s{sQ+2}", "salu", rd=[s(sQ + 2)], wr=[s(sQ + 2)])]
        S_.softmax(1, False)
    elif kt == 6:
        sa[23] += [salu("s_mov_b32", s(sO + 2), 0 if LB and opt["lbm"] < 2 else QBYTES)]
        sa[25] += [salu("s_lshl_b32", s(sOoff), 0 if LB else s(sTile), 15)]
        sa[27] += [salu("s_add_u32", s(sOoff), s(sOoff), s(sBase))]
        sa[29] += [salu("s_add_u32", s(sOoff2), s(sOoff), 4096)]
        S_.softmax(0, False)
    elif kt == 7:
        rd = q_reads(1)
        ds[4] += [wait_vm("QH1")] + rd[0]; ds[6] += rd[1]; ds[8] = rd[2] + rd[3] + ds[8]
        S_.softmax(1, False)
        S_.place(window(q_movs(), 0, 16))
        for g in range(18, NS): SM7_REST.extend(S_.ex[g] + S_.va[g])
        S_.place(window(max_first16(0) + max_finish(), 28, 33))
    else:
        S_.softmax(kt % 2, False)
    print(f"step {kt} model", sum(max(16, 8 + 4 * S_.load(g)) for g in range(NS)), "".join(str(S_.load(g)) for g in range(NS)), file=sys.stderr)
    seq = [label(f"L_seg{kt}")]
    for g in range(NS):
        if kt == 7 and g == 18:
            seq += [raw(f"s_cmp_eq_u32 s{sTile}, s{sLast}", "salu", rd=[s(sTile), s(sLast)]), raw("s_cbranch_scc1 L_seg8", "br"), "EXIT"]
        if kt == 1 and g < 18:
            mf = pv_mfma(0, g, True) if g < 16 else l_mfma(0, g - 16, True)
        elif g < 2: mf = l_mfma((kt - 1) % 2, g, False)
        elif g < 18: mf = pv_mfma((kt - 1) % 2, g - 2, False)
        else: mf = qk_mfma((kt + 1) % 2, g - 18, kt != 7)
        grp = WAITGRP.get(g) if not (kt == 1 and g == 9) else None
        if kt == 1 and g == 8: grp = (16, 8)
        if kt == 1 and g == 12: grp = (24, 8)
        if grp: mf.also |= set(vr(FR + grp[0], grp[1]))
        seq.append(mf)
        seq += S_.gap(g)
    for x in opt["drop"].split(","):
        if x: seq = [i for i in seq if not (isinstance(i, I) and i.text.startswith(x))]
    return seq + wexit(kt % 2 == 1)

def flatten(seq, first=False, last=False):
    st, tr = [], []
    done = False
    def add(l, static=True):
        if static: st.extend(l)
        if not done: tr.extend(l)
    for x in seq:
        if x == "EXIT":
            if last: done = True
        elif isinstance(x, Cond):
            add(x.head[:1])
            if first: add(flatten(x.ool)[1], False)
            add(x.head[1:])
        elif isinstance(x, Guard):
            add(x.head + x.body + x.tail)
        elif isinstance(x, Call):
            add(x.head); add({False: kscale, True: vrelay, 2: kvsub}[x.isv], False)
        else:
            add([x])
    return st, tr

pro = []
A = pro.append
def srd(reg, lo, nb):
    return [salu("s_mov_b32", s(reg), s(lo)), salu("s_and_b32", s(reg + 1), s(lo + 1), 0xffff),
            salu("s_mov_b32", s(reg + 2), nb), salu("s_mov_b32", s(reg + 3), 0x20000)]
A(raw("s_cmp_ge_u32 s2, 256", "salu", rd=["s2"]))
A(raw("s_cbranch_scc1 L_end", "br"))
A(raw("s_load_dwordx4 s[4:7], s[0:1], 0", "smem"))
A(raw("s_load_dwordx4 s[24:27], s[0:1], 16", "smem"))
tA, tB, tC, tD, vLane = SS, SS + 1, SS + 2, SS + 3, SS + 6
A(raw("s_getpc_b64 s[38:39]", "salu", wr=["s38", "s39"]))
A(label("L_pc"))
if opt["cpf"]:
    A(valu("v_lshlrev_b32", v(tC), 5, "v0"))
    A(raw(f"v_min_u32 v{tC}, L_slow-L_pc-32, v{tC}", "valu", rd=[v(tC)], wr=[v(tC)]))
    A(I(f"global_load_dwordx4 v[{SS+8}:{SS+11}], v{tC}, s[38:39]", "vld", rd=[v(tC), "s38", "s39"], wr=vr(SS + 8, 4)))
pro += stamp(98) + stamp(100, True)
A(valu("v_lshrrev_b32", v(tA), 6, "v0"))
A(valu("v_and_b32", v(vLane), 63, "v0"))
A(raw(f"v_readfirstlane_b32 s{sWave}, v{tA}", "rfl", rd=[v(tA)], wr=[s(sWave)]))
A(salu("s_lshr_b32", "s40", "s2", 4))
A(salu("s_lshl_b32", "s40", "s40", 3))
A(salu("s_and_b32", "s41", "s2", 7))
A(salu("s_add_u32", "s40", "s40", "s41"))
A(salu("s_bfe_u32", "s41", "s2", 0x10003))
A(salu("s_lshl_b32", s(sKV), "s40", 16))
A(salu("s_lshl1_add_u32", "s40", "s40", "s41"))
A(salu("s_lshl_b32", s(sBase), "s40", 18))
A(salu("s_and_b32", "s40", s(sWave), 3))
A(salu("s_lshl_b32", "s41", "s40", 13))
A(salu("s_add_u32", s(sBase), s(sBase), "s41"))
A(valu("v_lshrrev_b32", v(tA), 3, v(vLane)))
A(valu("v_and_b32", v(tB), 7, v(vLane)))
A(valu("v_lshlrev_b32", v(vG), 10, v(tA)))
A(valu("v_lshl_add_u32", v(vG), v(tB), 4, v(vG)))
A(valu("v_lshrrev_b32", v(tD), 4, v(vLane)))
A(salu("s_lshl_b32", "s42", "s40", 11))
A(valu("v_lshlrev_b32", v(vKd), 8, v(tB)))
A(valu("v_lshl_add_u32", v(vKd), v(tA), 4, v(vKd)))
A(valu("v_add_u32", v(vKd), "s42", v(vKd)))
A(salu("s_lshl_b32", "s41", "s40", 10))
A(raw(f"s_cmp_lt_u32 s{sWave}, 4", "salu", rd=[s(sWave)]))
A(raw("s_waitcnt lgkmcnt(0)", "fullwait"))
if STAMP: A(raw("s_mov_b32 s3, s98")); A(raw("s_mov_b32 s46, s100"))
A(raw("s_cbranch_scc1 L_groupA", "br"))
pro_head = pro
proB0 = srd(sK, 6, KBYTES) + dma("K0") + dma("K1") + [raw("s_branch L_groupB", "br")]

def consts():
    c = []
    A = c.append
    c += srd(sO, 26, 0)
    A(salu("s_mov_b32", s(sThr), fbits(2.0 ** 30)))
    A(salu("s_lshl_b32", "s35", s(sWave), 12))
    A(salu("s_add_u32", "s35", "s35", LDS_SCR))
    A(salu("s_mov_b32", s(sScr), "s35"))
    A(valu("v_xor_b32", v(tC), v(tB), v(tD)))
    A(valu("v_lshlrev_b32", v(vQd), 8, v(tA)))
    A(valu("v_lshl_add_u32", v(vQd), v(tC), 4, v(vQd)))
    A(valu("v_xor_b32", v(vQd + 1), 64, v(vQd)))
    A(valu("v_lshlrev_b32", v(tC), 1, v(tA)))
    A(valu("v_and_b32", v(tC), 7, v(tC)))
    A(valu("v_xor_b32", v(tC), v(tC), v(tB)))
    A(valu("v_lshlrev_b32", v(vRw), 9, v(tA)))
    A(valu("v_lshl_add_u32", v(vRw), v(tC), 4, v(vRw)))
    A(valu("v_add_u32", v(vRw), "s35", v(vRw)))
    A(valu("v_and_b32", v(tA), 15, v(vLane)))
    A(valu("v_bfe_u32", v(tC), v(vLane), 1, 3))
    A(valu("v_lshlrev_b32", v(vFr), 7, v(tA)))
    A(valu("v_add_u32", v(vFr), "s35", v(vFr)))
    A(valu("v_lshlrev_b32", v(vGo), 10, v(tD)))
    A(valu("v_lshl_add_u32", v(vGo), v(tA), 4, v(vGo)))
    A(valu("v_and_b32", v(tB), 1, v(tD)))
    A(valu("v_xor_b32", v(tC), v(tC), v(tD)))
    A(valu("v_lshl_add_u32", v(vFr), v(tC), 4, v(vFr)))
    A(valu("v_xor_b32", v(vFr1), 64, v(vFr)))
    for i in range(4): A(valu("v_mov_b32", v(ONES + i), 0x3f803f80))
    A(valu("v_lshrrev_b32", v(tC), 3, v(tA)))
    A(valu("v_lshlrev_b32", v(vK), 10, v(tC)))
    A(valu("v_and_b32", v(tC), 7, v(vLane)))
    A(valu("v_lshl_add_u32", v(vK), v(tC), 4, v(vK)))
    A(valu("v_lshl_add_u32", v(vK), v(tD), 7, v(vK)))
    A(valu("v_bfe_u32", v(tC), v(vLane), 2, 2))
    A(valu("v_mul_u32_u24", v(vV), 288, v(tC)))
    A(valu("v_lshl_add_u32", v(vV), v(tB), 7, v(vV)))
    A(valu("v_lshrrev_b32", v(tC), 5, v(vLane)))
    A(valu("v_lshl_add_u32", v(vV), v(tC), 11, v(vV)))
    A(valu("v_and_b32", v(tC), 3, v(vLane)))
    A(valu("v_lshl_add_u32", v(vV), v(tC), 3, v(vV)))
    A(valu("v_add_u32", v(vV), LDS_V, v(vV)))
    for t in range(1, 4):
        A(valu("v_xor_b32", v(vV + t), t * 32, v(vV)))
    A(salu("s_add_u32", s(sQoff), s(sBase), TSTRIDE))
    A(salu("s_mov_b32", s(sOoff), s(sBase)))
    A(salu("s_mov_b32", s(sOoff2), s(sBase)))
    A(salu("s_mov_b32", s(sTile), 0))
    A(salu("s_mov_b32", s(sBad), 0))
    return c

proA = [label("L_groupA")] + srd(sQ, 4, QBYTES) + q_loads(T, s(sBase)) + stamp(56)
proA += [salu("s_mov_b32", s(sLast), NA - 1), salu("s_mov_b32", s(sCut), (99 if opt["lbm"] else 0) if LB else NA - 2),
         raw("s_mov_b64 vcc, -1", "salu", wr=["vcc"])]
proA += consts()
if opt["warm"]:
    proA += [salu("s_mov_b32", s(sQ + 2), 0), raw("s_mov_b64 vcc, 0", "salu", wr=["vcc"]), raw("s_mov_b64 exec, 0", "salu", wr=["exec"])]
    for k in range(4):
        proA += [raw(f"s_cmp_eq_u32 s40, {k}", "salu", rd=["s40"]), raw(f"s_cbranch_scc1 L_seg{2*k}", "br")]
    proA += [label("L_warm_ret"), raw("s_mov_b64 exec, -1", "salu", wr=["exec"]), raw("s_setprio 0", "salu"),
             salu("s_mov_b32", s(sQ + 2), QBYTES), salu("s_mov_b32", s(sO + 2), 0),
             salu("s_add_u32", s(sQoff), s(sBase), TSTRIDE), salu("s_mov_b32", s(sOoff), s(sBase)),
             salu("s_mov_b32", s(sBad), 0), raw("s_mov_b64 vcc, -1", "salu", wr=["vcc"])]
proA += flat(q_writes(T, 0) + q_reads(0) + q_writes(T, 1) + q_reads(1))
def first_h0(): return flat([q_dma(0, j, vr(QC, 32) if j == 0 else ())[0] + [q_dma(0, j, vr(QC, 32) if j == 0 else ())[1]] for j in range(4)])
if opt["xq1"]: proA += [salu("s_mov_b32", s(sQ + 2), 0)]
proA += [raw("s_barrier", "bar")]
proC = [label("L_start")] + stamp(62, STAMP == 2)
for kb in range(2):
    for ds_ in range(4): proC += kfrag(0, kb, ds_)
proC += first_h0()
mx = max_first16(0) + max_finish()
for m in range(16):
    proC.append(qk_mfma(0, m, False))
    if m >= 10: proC += mx[(m - 10) * 2:(m - 10) * 2 + 2]
proC += mx[12:]
proB = [label("L_groupB")] + ([raw("s_setprio 3")] if opt["bprio"] else [])
A = proB.append
A(salu("s_add_u32", s(sBase), s(sBase), 5 * TSTRIDE if LB else NA * TSTRIDE))
proB += dma("K2")
A(valu("v_lshlrev_b32", v(vVd), 4, v(vLane)))
A(salu("s_lshl_b32", "s45", "s40", 11))
A(salu("s_add_u32", "s44", s(sKV), "s45"))
proB += srd(sV, 24, KBYTES)
proB += dma("V0")
for t in ["K3", "V1", "K4", "V2", "K5", "V3"][:opt["up"] - 4]: proB += dma(t)
proB += stamp(56)
proB += srd(sQ, 4, QBYTES)
A(salu("s_mov_b32", s(sC), fbits(math.log2(math.e) / math.sqrt(128.0))))
A(raw(f"s_add_u32 s{sSub}, s38, L_kscale-L_pc", "salu", rd=["s38"], wr=[s(sSub)]))
A(raw(f"s_addc_u32 s{sSub+1}, s39, 0", "salu", rd=["s39"], wr=[s(sSub + 1)]))
A(valu("v_lshl_add_u32", v(vKs), v(vLane), 4, "s41"))
A(raw(f"s_add_u32 s{sSubV}, s38, L_vrelay-L_pc", "salu", rd=["s38"], wr=[s(sSubV)]))
A(raw(f"s_addc_u32 s{sSubV+1}, s39, 0", "salu", rd=["s39"], wr=[s(sSubV + 1)]))
A(raw(f"s_add_u32 s{sSubKV}, s38, L_kv-L_pc", "salu", rd=["s38"], wr=[s(sSubKV)]))
A(raw(f"s_addc_u32 s{sSubKV+1}, s39, 0", "salu", rd=["s39"], wr=[s(sSubKV + 1)]))
A(salu("s_add_u32", "s35", "s45", LDS_V))
A(valu("v_lshrrev_b32", v(tC), 2, v(vLane)))
A(valu("v_lshl_add_u32", v(vVr), v(tC), 4, "s35"))
A(valu("v_bfe_u32", v(tC), v(vLane), 1, 1))
A(valu("v_lshl_add_u32", v(vVr), v(tC), 8, v(vVr)))
A(valu("v_and_b32", v(tC), 1, v(vLane)))
A(valu("v_lshl_add_u32", v(vVr), v(tC), 3, v(vVr)))
A(valu("v_lshl_add_u32", v(vVw), v(tD), 3, "s35"))
A(valu("v_bfe_u32", v(tC), v(vLane), 2, 1))
A(valu("v_lshl_add_u32", v(vVw), v(tC), 10, v(vVw)))
A(valu("v_and_b32", v(tC), 1, v(tA)))
A(valu("v_lshl_add_u32", v(vVw), v(tC), 8, v(vVw)))
A(valu("v_and_b32", v(vX), 3, v(vLane)))
A(valu("v_xor_b32", v(tC), v(tC), v(vX)))
A(valu("v_lshl_add_u32", v(vVw), v(tC), 5, v(vVw)))
A(valu("v_xor_b32", v(vVw + 1), 64, v(vVw)))
A(valu("v_add_u32", v(vVw + 1), 512, v(vVw + 1)))
proB += [salu("s_mov_b32", s(sLast), NB - 1), salu("s_mov_b32", s(sCut), (99 if opt["lbm"] else 0) if LB else NB - 2), raw("s_mov_b64 vcc, 0", "salu", wr=["vcc"])]
proB += consts()
_bn = [0]
def lg0():
    return raw("s_waitcnt lgkmcnt(0)", "fullwait")
def bar():
    if STAMP and not LB:
        _bn[0] += 1
        return raw(f"s_memtime s[60:61]\n    s_waitcnt lgkmcnt(0)\n    s_mov_b32 s{88 + _bn[0]}, s60\n    s_barrier", "bar")
    return raw("s_barrier", "bar")
ORD = ["K0", "K1", "K2", "V0", "K3", "V1", "K4", "V2", "K5", "V3", "K6", "V4", "K7", "V5", "V6", "V7"]
UP, MID = opt["up"], opt["mid"]
proB += [wait_vm("K0"), Call(), wait_vm("K1"), Call(), lg0(), bar()]
q0 = q_loads(T, s(sBase))
units = [dma(t) for t in ORD[UP:]]
proB += flat(units[:MID]); units = units[MID:]
kdone = 1; vdone = -1
for n, site in enumerate(SITES):
    nxt = SITES[n + 1] if n + 1 < len(SITES) else 8
    ks = list(range(kdone + 1, min(nxt + 1, 7) + 1)); vs = list(range(vdone + 1, nxt))
    while ks or vs:
        if ks and vs:
            kdone = ks.pop(0); vdone = vs.pop(0)
            proB += [wait_vm(f"K{kdone}", f"V{vdone}"), Call(2)]
        elif ks:
            kdone = ks.pop(0); proB += [wait_vm(f"K{kdone}"), Call()]
        else:
            vdone = vs.pop(0); proB += [wait_vm(f"V{vdone}"), Call(True)]
    proB += [lg0(), bar()]
    m = opt["per"]
    proB += flat(units[:m]); units = units[m:]
    if site == opt["q0at"]:
        assert not units
        proB += q0
proB += flat(q_writes(T, 0) + q_reads(0) + q_writes(T, 1) + q_reads(1))
proB += [raw("s_branch " + ("L_end" if LB == 1 else "L_start"), "br")]
proA_st, proA_tr = flatten(proA + proC)
proB_st, proB_tr = flatten(proB)

steps = []
for kt in range(8):
    steps += make_step(kt)
steps += [salu("s_add_u32", s(sTile), s(sTile), 1)]
steps += [raw("s_branch L_seg0", "br")]
body_st, body_tr0 = flatten(steps, first=True)
body_tr = flatten(steps)[1]
body_trl = flatten(steps, last=True)[1]

import copy
tail = [label("L_seg8")]
tail += stamp(58, STAMP == 2)
for dt in range(8): tail += vfrag(7, dt)
tail += [copy.copy(x) for x in SM7_REST]
tail += [l_mfma(1, 0, False), l_mfma(1, 1, False)]
pv = [pv_mfma(1, m, False) for m in range(16)]
pk = pack_stream(0, 8)
lr = lred()
tail += pv[:3]
for m in range(3, 16):
    tail += [pv[m]] + lr[m - 3:m - 2]
tail += bad_update()[0]
tail += flat([pack_stream(u, u + 1) for u in (0, 2, 4, 6)]) + o_stores()[:4] + flat([pack_stream(u, u + 1) for u in (1, 3, 5, 7)]) + o_stores()[4:]
if STAMP:
    tail += [raw("s_waitcnt vmcnt(0) lgkmcnt(0)", "fullwait")] + stamp(24) + stamp(26, True)
    tail += [raw("s_load_dwordx2 s[6:7], s[0:1], 40", "smem"), raw("s_waitcnt lgkmcnt(0)", "fullwait"),
             raw("s_mov_b32 s96, s62"),
             raw("s_mov_b32 s8, s6"), raw("s_and_b32 s9, s7, 0xffff"), raw("s_mov_b32 s10, 0x10000000"), raw("s_mov_b32 s11, 0x20000"),
             raw(f"s_lshl_b32 s35, s2, 3"), raw(f"s_add_u32 s35, s35, s{sWave}"), raw("s_mul_i32 s35, s35, 192"),
             raw("s_getreg_b32 s97, hwreg(HW_REG_HW_ID)"), raw("v_mov_b32 v32, 0", "valu")]
    regs = [3, 46, 56, 56, 58, 58, 24, 26] + list(range(64, 102))
    for i, r in enumerate(regs):
        tail += [raw(f"v_mov_b32 v33, s{r}", "valu"), raw(f"buffer_store_dword v33, v32, s[8:11], s35 offen offset:{4*i}", "vst"), raw("s_nop 1")]
tail += [salu("s_lshl_b32", "s41", 1, s(sLast)), salu("s_lshl_b32", "s40", "s41", 1), salu("s_sub_u32", "s40", "s40", 1),
         salu("s_and_b32", s(sBad), s(sBad), "s40"), raw("s_cbranch_scc1 " + ("L_end" if BROKEN or STAMP else "L_slow"), "br"),
         label("L_end"), raw("s_endpgm", "br")]
ool = []
for c in Cond.blocks: ool += flatten(c.ool)[0]
ool += kscale + vrelay + kvsub

vD, vD1, vKa, vVa = T, T + 1, T + 2, T + 4
slow_pre = [label("L_slow"), raw("s_waitcnt vmcnt(0) lgkmcnt(0)", "fullwait"),
            salu("s_mov_b32", s(sQ + 2), QBYTES),
            raw(f"v_mbcnt_lo_u32_b32 v{vD}, -1, 0", "valu", wr=[v(vD)]),
            raw(f"v_mbcnt_hi_u32_b32 v{vD}, -1, v{vD}", "valu", rd=[v(vD)], wr=[v(vD)]),
            valu("v_lshrrev_b32", v(vX), 4, v(vD)),
            valu("v_and_b32", v(vD), 15, v(vD)),
            valu("v_lshlrev_b32", v(vD), 8, v(vD)),
            valu("v_lshl_add_u32", v(vD), v(vX), 4, v(vD)),
            salu("s_mov_b32", "s40", s(sBase))]
st_head = [label("L_slow_tile"),
           raw(f"s_and_b32 s42, s{sBad}, s41", "salu", rd=[s(sBad), "s41"], wr=["s42"]),
           raw("s_cbranch_scc0 L_slow_next", "br")]
st_a = [salu("s_add_u32", "s39", "s40", 4096)]
st_a += [buf_load(Qreg(qb, ds_), 4, vD, sQ, ("s40", "s39")[qb], ds_ * 64) for qb in range(2) for ds_ in range(4)]
st_a += [valu("v_mov_b32", v(vMa), 0xff800000), valu("v_mov_b32", v(vMb), 0xff800000),
         valu("v_mov_b32", v(vKa), v(vK)), salu("s_mov_b32", "s35", 0)]
def slow_qk(shifted):
    o = []
    for kb in range(2):
        for ds_ in range(4): o += kfrag(0, kb, ds_, vKa)
    return o + [qk_mfma(0, m, shifted) for m in range(16)]
def slow_loop(lbl):
    return [salu("s_add_u32", "s35", "s35", 1), raw("s_cmp_lt_u32 s35, 8", "salu", rd=["s35"]), raw(f"s_cbranch_scc1 {lbl}", "br")]
p1 = [label("L_slow_p1")] + slow_qk(False)
for i in range(0, 8, 2):
    for qb in range(2):
        p1.append(valu("v_max3_f32", v((vMa, vMb)[qb]), v((vMa, vMb)[qb]), v(SS + 8 * qb + i), v(SS + 8 * qb + i + 1)))
p1 += [valu("v_add_u32", v(vKa), 8192, v(vKa))] + slow_loop("L_slow_p1")
st_b = max_finish() + [valu("v_mov_b32", v(vL + i), 0) for i in range(8)] + [valu("v_mov_b32", v(vKa), v(vK)),
                       salu("s_mov_b32", "s35", 0)]
st_b += [valu("v_mov_b32", v(vVa + t), v(vV + t)) for t in range(4)]
st_b += [valu("v_mov_b32", v(O + i), 0) for i in range(64)]
p2 = [label("L_slow_p2")] + slow_qk(True)
for dt in range(8): p2 += vfrag(0, dt, vVa)
p2 += softmax_stream(0, False) + [l_mfma(0, 0, False), l_mfma(0, 1, False)] + [pv_mfma(0, m, False) for m in range(16)]
p2 += [valu("v_add_u32", v(vKa), 8192, v(vKa))] + [valu("v_add_u32", v(vVa + t), 8192, v(vVa + t)) for t in range(4)]
p2 += slow_loop("L_slow_p2")
st_c = lred(check=False) + pack_stream(0, 8, QR) + o_stores(QR, ("s40", "s39"))
st_next = [label("L_slow_next"), salu("s_add_u32", "s40", "s40", TSTRIDE), salu("s_lshr_b32", "s41", "s41", 1),
           raw("s_cbranch_scc1 L_slow_tile", "br"), raw("s_endpgm", "br")]
slow = slow_pre + st_head + st_a + p1 + st_b + p2 + st_c + st_next

one = st_head + st_a + p1 + p1 + p1 + st_b + p2 + p2 + p2 + st_c + st_next
trA = pro_head + proA_tr + body_tr0 + body_tr + body_tr + body_trl + tail + slow_pre + one + one
trB = pro_head + proB0 + proB_tr + proC + body_tr + body_tr + body_trl + tail
for _ in range(2):
    analyze_waits(trA); analyze_waits(trB)
analyze_hazards(trA); analyze_hazards(trB); analyze_hazards(trA)
prog = pro_head + proB0 + proA_st + body_st + tail + ool + proB_st + slow

hdr = """; GQA attention, B32 Hq32 Hkv4 Sq256 Sk256 D128 bf16.  Generated by my own generator script (gen24.py).
; @launch grid=(256,1,1) block=(512,1,1) lds=163840
.amdgcn_target "amdgcn-amd-amdhsa--gfx950"
.text
.globl standalone__gqa_softmax__near_ridge_kernel
.p2align 8
.type standalone__gqa_softmax__near_ridge_kernel,@function
standalone__gqa_softmax__near_ridge_kernel:
"""
ftr = """
.section .rodata,"a"
.p2align 6
.amdhsa_kernel standalone__gqa_softmax__near_ridge_kernel
  .amdhsa_next_free_vgpr 256
  .amdhsa_next_free_sgpr 102
  .amdhsa_accum_offset 256
  .amdhsa_group_segment_fixed_size 0
  .amdhsa_kernarg_size 48
  .amdhsa_user_sgpr_count 2
  .amdhsa_user_sgpr_kernarg_segment_ptr 1
  .amdhsa_system_sgpr_workgroup_id_x 1
.end_amdhsa_kernel
"""
body = emit(prog)
if opt['al']: body = align_pass(body, opt['al'])
print(hdr + body + ftr)
```

```python
import sys, struct, math
from asmlib import *

opt = dict(qf="nt", kvf="", of="sc1", prio=5, stamp=0, warm=0, cpf=1, xsm="", xnolds=0, early=1, nsite=8, na=5, pk0=5, pks=13, al=0, up=4, mid=4, per=2, lbm=0, qsite=-1, bprio=0, sites="01234567", q0at=4, xq1=0, peel=1, map=0, k0=0, qa=1, lb=0, drop="")
for a in sys.argv[1:]:
    k, v = a.split("=")
    opt[k] = int(v) if v.lstrip("-").isdigit() and k != "sites" else v.replace("+", " ")
QF, KVF, OF = opt["qf"], opt["kvf"], opt["of"]
BROKEN = bool(opt["xsm"] or opt["xnolds"])

def fbits(x): return struct.unpack("<I", struct.pack("<f", x))[0]

vX, vK, vV, vFr, vGo, vQd, vMa, vMb, ONES, NM, vL = 0, 1, 2, 6, 7, 8, 10, 11, 12, 16, 24
vRw, vG, vFr1 = 112, 113, 114
QN = 96
ASP, LI, AT, vIdx = 28, 116, 124, 115
sScr = 47
vKs, vVr, vVw = vL, vL + 1, vL + 2
FR, QC, QR, T, SS, O = 32, 64, 96, 128, 160, 192
sQ, sK, sV, sO = 8, 12, 16, 20
sC, sThr, sTile, sQoff, sOoff, sBad, sWave, sBase, sKV = 28, 29, 30, 31, 32, 33, 34, 36, 37
sSubKV = 100
sRet, sSub, sSubV, sChk, sLast, sCut, sOoff2 = 52, 54, 50, 48, 43, 38, 39
QBYTES, KBYTES = 64 << 20, 8 << 20
LDS_V, LDS_SCR = 65536, 131072
NS = 33
TSTRIDE = 32768
NA = opt['na']; NB = 8 - NA
LB = opt['lb']
if LB: NA = NB = 24; BROKEN = True
if 0: pass

def v(n): return f"v{n}"
def s(n): return f"s{n}"
def Sreg(sb, kb, qb): return SS + 16 * sb + 8 * kb + 4 * qb
def Preg(sb, qb): return SS + 16 * sb + 4 * qb
def Oreg(dt, qb): return O + (dt * 2 + qb) * 4
def Qreg(qb, ds): return QC + (qb * 4 + ds) * 4

def kfrag(kt, kb, ds, addr=vK):
    return [ds_read(FR + 4 * (4 * kb + ds), 4, addr, kt * 8192 + (ds >> 1) * 4096 + kb * 2048 + (ds & 1) * 512)]
def vfrag(kt, dt, addr=vV):
    o = kt * 8192 + (dt >> 2) * 1024
    return [ds_read(FR + 4 * dt, 2, addr + (dt & 3), o, tr=True),
            ds_read(FR + 4 * dt + 2, 2, addr + (dt & 3), o + 4096, tr=True)]
def qk_mfma(sb, m, shifted):
    kb, qb, ds = m >> 3, (m >> 2) & 1, m & 3
    d = Sreg(sb, kb, qb)
    c = d if ds else (NM + 4 * qb if shifted else None)
    return mfma16(d, FR + 4 * (4 * kb + ds), Qreg(qb, ds), c)
def pv_mfma(sb, m, first):
    dt, qb = m >> 1, m & 1
    return mfma16(Oreg(dt, qb), Preg(sb, qb), FR + 4 * dt, None if first else Oreg(dt, qb))

def l_mfma(sb):
    p = Preg(sb, 0)
    i = I(f"v_smfmac_f32_16x16x64_bf16 {V(vL,4)}, {V(ASP,4)}, {V(p,8)}, v{vIdx}", "mfma",
          rd=vr(ASP, 4) + vr(p, 8) + vr(vL, 4) + [v(vIdx)], wr=vr(vL, 4), a=vr(ASP, 4) + [v(vIdx)], b=vr(p, 8), c=vr(vL, 4))
    i.passes = 4
    return i

def softmax_stream(sb, first):
    pairs = [(kb, qb, h) for kb in range(2) for qb in range(2) for h in range(2)]
    out = []; seen = set()
    lag = 1 if first else 0
    for p in range(8 + 1 + lag):
        if first and p < 8:
            kb, qb, h = pairs[p]; r = Sreg(sb, kb, qb) + 2 * h
            out.append(valu("v_add_f32", v(r), v(r), v(NM + 4 * qb)))
            out.append(valu("v_add_f32", v(r + 1), v(r + 1), v(NM + 4 * qb)))
        if lag <= p < 8 + lag:
            kb, qb, h = pairs[p - lag]; r = Sreg(sb, kb, qb) + 2 * h
            out.append(trans("v_exp_f32", v(r), v(r)))
            out.append(trans("v_exp_f32", v(r + 1), v(r + 1)))
        if p >= 1 + lag:
            kb, qb, h = pairs[p - 1 - lag]; r = Sreg(sb, kb, qb) + 2 * h
            out.append(valu("v_cvt_pk_bf16_f32", v(Preg(sb, qb) + 2 * kb + h), v(r), v(r + 1)))
    for x in opt["xsm"].split(","):
        if x: out = [i for i in out if not i.text.startswith(x)]
    return out

def xreduce(op, a, b, ra, rb):
    return [permswap(a, b), valu(op, v(ra), v(a), v(b)), valu("v_mov_b32", v(rb), v(ra)),
            permswap16(ra, rb), valu(op, v(ra), v(ra), v(rb)), valu("v_mov_b32", v(rb), v(ra)),
            permswap(ra, rb)]
def max_first16(sb):
    a, b = Sreg(sb, 0, 0), Sreg(sb, 0, 1)
    return [valu("v_max3_f32", v(vMa), v(a), v(a + 1), v(a + 2)), valu("v_max_f32", v(vMa), v(vMa), v(a + 3)),
            valu("v_max3_f32", v(vMb), v(b), v(b + 1), v(b + 2)), valu("v_max_f32", v(vMb), v(vMb), v(b + 3))]
def max_finish():
    return xreduce("v_max_f32", vMa, vMb, vMa, vMb) + \
        [valu("v_sub_f32", v(NM + i), 0, v((vMa, vMb)[i >> 2])) for i in range(8)]
def lred(check=True):
    head = [valu("v_add_f32", v(vMa), v(vL), v(vL + 1)), valu("v_add_f32", v(vMb), v(vL + 2), v(vL + 3))]
    if check:
        head += [valu("v_max_f32", v(vX), v(vMa), v(vMb)),
                 raw(f"v_cmp_nge_f32_e64 s[{sChk}:{sChk+1}], s{sThr}, v{vX}", "valu", rd=[s(sThr), v(vX)], wr=sr(sChk, 2))]
    head += [trans("v_rcp_f32", v(vMa), v(vMa)), trans("v_rcp_f32", v(vMb), v(vMb))]
    def split(x):
        return [valu("v_cvt_pk_bf16_f32", v(vX), v(x), v(x)), valu("v_and_b32", v(vX), 0xffff0000, v(vX)),
                valu("v_sub_f32", v(vX), v(x), v(vX)), valu("v_cvt_pk_bf16_f32", v(AT), v(x), v(vX))]
    return head, split(vMa), [mfma16(LI, AT, ONES, None)], split(vMb), [mfma16(LI + 4, AT, ONES, None)]
def lzero(): return [valu("v_mov_b32", v(vL + i), 0) for i in range(4)]
def bad_update():
    return [[raw(f"s_cmp_lg_u64 s[{sChk}:{sChk+1}], 0", "salu", rd=sr(sChk, 2)),
             raw(f"s_addc_u32 s{sBad}, s{sBad}, s{sBad}", "salu", rd=[s(sBad)], wr=[s(sBad)])]]

def pack_stream(u0, u1, dst=T):
    out = []; pend = []
    for u in range(u0, u1):
        j, qb = u >> 1, u & 1
        a, b = Oreg(2 * j, qb), Oreg(2 * j + 1, qb)
        for r in range(4):
            out.append(valu("v_mul_f32", v(a + r), v(a + r), v(LI + 4 * qb + r)))
            out.append(valu("v_mul_f32", v(b + r), v(b + r), v(LI + 4 * qb + r)))
            out += pend
            pend = [valu("v_cvt_pk_bf16_f32", v(dst + 16 * qb + 4 * r + j), v(a + r), v(b + r))]
    return out + pend

def xaddr(base, x):
    if x == 0: return [], base
    return [valu("v_xor_b32", v(vX), x, v(base))], vX
def o_stores(src=T, so=None):
    so = so or (s(sOoff), s(sOoff2))
    return [buf_store(src + 16 * qb + 4 * r, 4, vGo, sO, so[qb], r * 256, OF) for qb in range(2) for r in range(4)]
def q_writes(src, half):
    pre, a = xaddr(vRw, 16)
    return [[ds_write(vRw, src + 16 * half, 4, 0)], [ds_write(vRw, src + 16 * half + 4, 4, 128)],
            pre + [ds_write(a, src + 16 * half + 8, 4, 256)], [ds_write(a, src + 16 * half + 12, 4, 384)]]
def q_reads(half, dst=None):
    d = lambda qb, x: Qreg(qb, 2 * half + x) if dst is None else dst + 8 * qb + 4 * x
    return [[ds_read(d(qb, x), 4, (vFr, vFr1)[x], 2048 * qb)] for x in range(2) for qb in range(2)]
def q_dma(half, j, after=()):
    i = buf_load_lds(vQd + (j & 1), sQ, "s42", 0, QF, tag=f"QH{half}")
    i.also |= set(after)
    return [salu("s_add_u32", "m0", s(sScr), 1024 * j), salu("s_add_u32", "s42", s(sQoff), 2048 * j + 128 * half)], i
def q_movs():
    return [valu("v_mov_b32", v(Qreg(qb, 0) + i), v(QN + 8 * qb + i)) for qb in range(2) for i in range(8)]
def flat(ll): return [x for l in ll for x in l]
def q_loads(dst, soff):
    return [buf_load(dst + 16 * half + 4 * j, 4, vG, sQ, soff, j * 256 + half * 128, QF)
            for half in range(2) for j in range(4)]

class Cond:
    blocks = []
    ninl = 0
    def __init__(self, body, inline=False):
        self.inline = inline
        if inline:
            Cond.ninl += 1
            self.head = [raw(f"s_cbranch_vccz L_inl{Cond.ninl}", "br"), label(f"L_inl{Cond.ninl}")]
            self.ool = body
            return
        n = len(Cond.blocks)
        self.head = [raw(f"s_cbranch_vccnz L_sync{n}", "br"), label(f"L_back{n}")]
        self.ool = [label(f"L_sync{n}")] + body + [raw(f"s_branch L_back{n}", "br")]
        Cond.blocks.append(self)
class Guard:
    n = 0
    def __init__(self, body):
        Guard.n += 1
        on = bool(opt["warm"])
        self.head = [raw(f"s_cbranch_execz L_g{Guard.n}", "br")] if on else []
        self.body = body
        self.tail = [label(f"L_g{Guard.n}")] if on else []
class Call:
    def __init__(self, isv=False):
        self.isv = isv
        t = {False: sSub, True: sSubV, 2: sSubKV}[isv]
        self.head = [raw(f"s_swappc_b64 s[{sRet}:{sRet+1}], s[{t}:{t+1}]", "br")]
def wexit(on=True):
    return [raw("s_cbranch_execz L_warm_ret", "br")] if opt["warm"] and on else []

def spread(gaps, stream, g0, g1):
    n = g1 - g0 + 1
    for i, ins in enumerate(stream):
        g = gaps[g0 + (i * n) // len(stream)]
        if isinstance(ins, list): g += ins
        else: g.append(ins)

vKd, vVd = QR + 28, QR + 29
def dma(tag):
    kt = int(tag[1]); isv = tag[0] == "V"
    out = []
    for h in range(2):
        if isv:
            out += [salu("s_add_u32", "m0", "s45", kt * 8192 + h * 1024 + LDS_V),
                    salu("s_add_u32", "s42", "s44", kt * 8192 + h * 1024),
                    buf_load_lds(vVd, sV, "s42", 0, KVF, tag=tag)]
        else:
            out += [salu("s_add_u32", "m0", "s41", kt * 8192 + h * 4096),
                    salu("s_add_u32", "s42", s(sKV), kt * 8192 + h * 128),
                    buf_load_lds(vKd, sK, "s42", 0, KVF, tag=tag)]
    return out
def a_sync(last):
    return [raw("s_barrier", "bar")] + ([raw("s_mov_b64 vcc, 0", "salu", wr=["vcc"])] if last else [])

KT = O
kscale = [label("L_kscale"), ds_read(KT, 4, vKs, 0), ds_read(KT + 4, 4, vKs, 4096)]
for i in range(8):
    kscale += [valu("v_lshlrev_b32", v(KT + 8 + (i & 3)), 16, v(KT + i)),
               valu("v_and_b32", v(KT + i), 0xffff0000, v(KT + i)),
               valu("v_mul_f32", v(KT + 8 + (i & 3)), s(sC), v(KT + 8 + (i & 3))),
               valu("v_mul_f32", v(KT + i), s(sC), v(KT + i)),
               valu("v_cvt_pk_bf16_f32", v(KT + i), v(KT + 8 + (i & 3)), v(KT + i))]
    if i == 3: kscale.append(ds_write(vKs, KT, 4, 0))
kscale += [ds_write(vKs, KT + 4, 4, 4096), valu("v_add_u32", v(vKs), 8192, v(vKs)),
           raw(f"s_setpc_b64 s[{sRet}:{sRet+1}]", "br")]

VT = O + 16
vrelay = [label("L_vrelay")] + [ds_read(VT + 2 * j, 2, vVr, 512 * j, tr=True) for j in range(4)]
vw = [ds_write(vVw + (j & 1), VT + 2 * j, 2, 128 * (j >> 1)) for j in range(4)]
vw[0].also |= set(vr(VT, 8))
vrelay += vw + [valu("v_add_u32", v(vVr), 8192, v(vVr)), valu("v_add_u32", v(vVw), 8192, v(vVw)),
                valu("v_add_u32", v(vVw + 1), 8192, v(vVw + 1)), raw(f"s_setpc_b64 s[{sRet}:{sRet+1}]", "br")]

def _cp(l):
    import copy
    out = []
    for x in l:
        y = copy.copy(x); y.also = set(x.also); out.append(y)
    return out
kvsub = [label("L_kv")] + _cp(vrelay[1:5]) + _cp(kscale[1:3]) + _cp(vrelay[5:12]) + _cp(kscale[3:])

STAMP = opt["stamp"]
def stamp(reg, real=False):
    if STAMP == 4 and reg not in (100, 26): return []
    return [raw(f"s_mem{'real' if real else ''}time s[{reg}:{reg+1}]", "smem")] if STAMP else []

def frag_reads(kt):
    k1, vp = (kt + 1) % 8, (kt - 1) % 8
    r = {0: vfrag(vp, 6), 2: vfrag(vp, 7)}
    for g, (kb, ds_) in zip(range(4, 20, 2), [(kb, d) for kb in range(2) for d in range(4)]):
        r[g] = kfrag(k1, kb, ds_)
    for dt in range(6): r[22 + 2 * dt] = vfrag(kt, dt)
    return r
QD_AT = [(7, 14), (7, 16), (7, 18), (7, 20), (3, 4), (3, 10), (3, 14), (3, 20)]
OST_AT = [(1, 20), (2, 6), (4, 6), (4, 20), (5, 6), (5, 20), (6, 6), (6, 20)]
WAITGRP = {0: (0, 16), 9: (16, 16), 17: (0, 16), 25: (16, 16)}
EGAPS = list(range(1, 33, 2))

def cost(i):
    if isinstance(i, Cond): return 0
    if isinstance(i, Guard): return sum(cost(x) for x in i.body)
    return {"trans": 2, "perm": 2, "dsw": 4, "vld": 2, "dma": 2, "vst": 3, "salu": 0, "smem": 0, "waitvm": 1, "mfma": 4}.get(i.kind, 1)

class Step:
    def __init__(self):
        self.sa = [[] for _ in range(NS)]
        self.ex = [[] for _ in range(NS)]
        self.ds = [[] for _ in range(NS)]
        self.va = [[] for _ in range(NS)]
    def load(self, g):
        n = sum(cost(i) for l in (self.ex[g], self.ds[g], self.va[g]) for i in l)
        n += max(0, len(self.sa[g]) - 1) + (1 if (g + 1) % NS in WAITGRP else 0)
        if self.ex[g] and self.ds[g]: n += 2
        return n
    def place(self, items):
        import functools
        base = [self.load(g) for g in range(NS)]
        pen = lambda x: 10 * max(0, x - 2) ** 2 + x * x * 0.01
        @functools.lru_cache(None)
        def best(k, g, add):
            if k == len(items): return (pen(base[g] + add) - pen(base[g]), ())
            ins, lo, hi = items[k]
            res = (1e18, ())
            if lo <= g <= hi:
                c, p = best(k + 1, g, add + cost(ins)); res = (c, (g,) + p)
            if g < hi:
                c, p = best(k, g + 1, 0); c += pen(base[g] + add) - pen(base[g])
                if c < res[0] - 1e-9: res = (c, p)
            return res
        c, pl = best(0, items[0][1], 0)
        assert c < 1e17
        for (ins, _, _), g in zip(items, pl): self.va[g].append(ins)
    def softmax(self, sb, first, egaps=EGAPS, last=NS - 1):
        st = softmax_stream(sb, first)
        ex = [i for i in st if i.kind == "trans"]
        where = {}
        for i, g in zip(ex, egaps):
            self.ex[g].append(i); where[next(iter(i.wr))] = g
        adds = [(i, 0, where[next(iter(i.wr))] - 1) for i in st if i.text.startswith("v_add")]
        cv = [(i, max(where[r] for r in i.rd) + 1, last) for i in st if i.text.startswith("v_cvt")]
        if adds: self.place(adds)
        if cv: self.place(cv)
    def gap(self, g):
        if self.ex[g] or g == NS - 1: return self.sa[g] + self.ex[g] + self.va[g] + self.ds[g]
        return self.sa[g] + self.ds[g] + self.va[g]

def window(stream, lo, hi): return [(i, lo, hi) for i in stream]
def pack_items(u0, u1, step):
    out = []
    for ins in pack_stream(u0, u1):
        acc = [(int(x[1:]) - O) // 4 for x in ins.rd if int(x[1:]) >= O]
        out.append((ins, max(min(7 + max(acc), NS - 1), opt["pks"]), NS - 1) if step == 0 else (ins, 0, min(acc)))
    return out

SM7_REST = []
SITES = [int(c) for c in str(opt["sites"]).zfill(1)]
def make_step(kt, first=False):
    S_ = Step(); sa, ds = S_.sa, S_.ds
    if STAMP and STAMP != 4 and (not LB or STAMP == 3):
        cur, prev = (60, 62) if kt % 2 == 0 else (62, 60)
        sa[19] += stamp(cur, STAMP == 2)
        sa[19] += [raw(f"s_min_u32 s35, s{sTile}, 3"), raw(f"s_lshl_b32 s35, s35, 3"), raw(f"s_add_u32 m0, s35, {kt}"), raw("s_nop 0"), raw(f"s_movreld_b32 s64, s{prev}")]
        if kt == 0: sa[19] += stamp(4, True)
        if kt == 1: sa[19] += [raw(f"s_min_u32 m0, s{sTile}, 3"), raw("s_nop 0"), raw(f"s_movreld_b32 s98, s4")]
    if LB and STAMP != 3 and kt == 0:
        sa[19] += stamp(60, STAMP == 2) + [raw(f"s_mov_b32 m0, s{sTile}"), raw("s_nop 0"), raw(f"s_movreld_b32 s64, s62"), raw("s_nop 0")]
    if LB and STAMP != 3 and kt == 4:
        sa[19] += [raw("s_mov_b32 s62, s60")]
    if kt in SITES and (first or kt >= 2 or not opt["peel"]):
        extra = [salu("s_mov_b32", s(sQ + 2), QBYTES)] if opt["xq1"] and kt == 6 else []
        sa[21].append(Cond(a_sync(kt == SITES[-1]) + extra, inline=first))
    if not opt["xnolds"]:
        for g, l in frag_reads(kt).items(): ds[g] += l
    if opt["prio"] == 1:
        sa[1].append(raw(f"s_setprio {3 - (2 * kt) % 4}")); sa[17].append(raw(f"s_setprio {3 - (2 * kt + 1) % 4}"))
    if opt["prio"] == 3:
        if kt == 7: sa[27].append(raw("s_setprio 0"))
        if kt == 1: sa[19].append(raw("s_setprio 2"))
    if opt["prio"] == 4:
        if kt == 6: sa[9].append(raw("s_setprio 0"))
        if kt == 2: sa[19].append(raw("s_setprio 2"))
    if opt["prio"] == 5:
        lv = {0: 0, 1: 0, 2: 3, 3: 3, 4: 2, 5: 2, 6: 1, 7: 1}
        if kt % 2 == 0: sa[1].append(raw(f"s_setprio {lv[kt]}"))
    if opt["prio"] == 2:
        for j, g in enumerate((1, 9, 17, 25)): sa[g].append(raw(f"s_setprio {3 - j}"))
    for i, (k2, g2) in enumerate(QD_AT):
        if k2 == kt:
            after = () if i & 3 else (vr(QN, 16) if i == 4 else [r for qb in range(2) for r in vr(Qreg(qb, 2), 8)])
            pre, ld = q_dma(i >> 2, i & 3, after)
            sa[g2 - 1] += pre[:1]; sa[g2] += pre[1:]; ds[g2].append(ld)
    for i, (k2, g2) in enumerate(OST_AT):
        if k2 == kt and not first: ds[g2].append(o_stores()[i])
    if first and kt == 0:
        spread(S_.va, softmax_stream(0, True), 17, 32)
    elif first:
        S_.softmax(1, False)
    elif kt == 0:
        sa[13] += bad_update()[0]
        S_.softmax(0, True)
        h, s0, m0, s1, m1 = lred()
        S_.place(window(h, 3, 6) + window(s0, 6, 8) + window(m0, 8, 8) + window(s1, 8, 10) + window(m1, 10, 10) + window(lzero(), 10, 14))
        S_.place(pack_items(0, opt["pk0"], 0))
    elif kt == 1:
        S_.softmax(1, False)
        S_.place(pack_items(opt["pk0"], 8, 1))
    elif kt == 2:
        rd = q_reads(0, QN)
        ds[14] += [wait_vm("QH0")] + rd[0]; ds[18] += rd[1]; ds[20] += rd[2] + rd[3]
        S_.softmax(0, False)
    elif kt == 5:
        sa[13] += [salu("s_add_u32", s(sQoff), s(sQoff), 0 if LB else TSTRIDE)]
        sa[15] += [raw(f"s_cmp_ge_u32 s{sTile}, s{sCut}", "salu", rd=[s(sTile), s(sCut)]),
                   raw(f"s_cselect_b32 s{sQ+2}, 0, s{sQ+2}", "salu", rd=[s(sQ + 2)], wr=[s(sQ + 2)])]
        S_.softmax(1, False)
    elif kt == 6:
        sa[23] += [salu("s_mov_b32", s(sO + 2), 0 if LB and opt["lbm"] < 2 else QBYTES)]
        sa[25] += [salu("s_lshl_b32", s(sOoff), 0 if LB else s(sTile), 15)]
        sa[27] += [salu("s_add_u32", s(sOoff), s(sOoff), s(sBase))]
        sa[29] += [salu("s_add_u32", s(sOoff2), s(sOoff), 4096)]
        S_.softmax(0, False)
    elif kt == 7:
        rd = q_reads(1)
        ds[4] += [wait_vm("QH1")] + rd[0]; ds[6] += rd[1]; ds[8] = rd[2] + rd[3] + ds[8]
        S_.softmax(1, False)
        S_.place(window(q_movs(), 0, 15))
        for g in range(17, NS): SM7_REST.extend(S_.ex[g] + S_.va[g])
        S_.place(window(max_first16(0) + max_finish(), 27, 32))
    else:
        S_.softmax(kt % 2, False)
    print(f"step {kt} model", sum(max(16, 8 + 4 * S_.load(g)) for g in range(NS)), "".join(str(S_.load(g)) for g in range(NS)), file=sys.stderr)
    seq = [label(f"L_seg{kt}" if not first else f"L_first{kt}")]
    for g in range(17 if first and kt == 0 else 0, NS):
        if kt == 7 and g == 17:
            seq += [raw(f"s_cmp_eq_u32 s{sTile}, s{sLast}", "salu", rd=[s(sTile), s(sLast)]), raw("s_cbranch_scc1 L_seg8", "br"), "EXIT"]
        if g == 0: mf = l_mfma((kt - 1) % 2)
        elif g < 17: mf = pv_mfma((kt - 1) % 2, g - 1, kt == 1)
        else: mf = qk_mfma((kt + 1) % 2, g - 17, kt != 7)
        grp = WAITGRP.get(g)
        if grp: mf.also |= set(vr(FR + grp[0], grp[1]))
        seq.append(mf)
        seq += S_.gap(g)
    for x in opt["drop"].split(","):
        if x: seq = [i for i in seq if not (isinstance(i, I) and i.text.startswith(x))]
    return seq + wexit(kt % 2 == 1)

def flatten(seq, first=False, last=False):
    st, tr = [], []
    done = False
    def add(l, static=True):
        if static: st.extend(l)
        if not done: tr.extend(l)
    for x in seq:
        if x == "EXIT":
            if last: done = True
        elif isinstance(x, Cond):
            add(x.head[:1])
            if x.inline: st.extend(x.ool)
            if first: add(flatten(x.ool)[1], False)
            add(x.head[1:])
        elif isinstance(x, Guard):
            add(x.head + x.body + x.tail)
        elif isinstance(x, Call):
            add(x.head); add({False: kscale, True: vrelay, 2: kvsub}[x.isv], False)
        else:
            add([x])
    return st, tr

pro = []
A = pro.append
def srd(reg, lo, nb):
    return [salu("s_mov_b32", s(reg), s(lo)), salu("s_and_b32", s(reg + 1), s(lo + 1), 0xffff),
            salu("s_mov_b32", s(reg + 2), nb), salu("s_mov_b32", s(reg + 3), 0x20000)]
A(raw("s_cmp_ge_u32 s2, 256", "salu", rd=["s2"]))
A(raw("s_cbranch_scc1 L_end", "br"))
A(raw("s_load_dwordx4 s[4:7], s[0:1], 0", "smem"))
A(raw("s_load_dwordx4 s[24:27], s[0:1], 16", "smem"))
tA, tB, tC, tD, vLane = SS, SS + 1, SS + 2, SS + 3, SS + 6
A(raw("s_getpc_b64 s[38:39]", "salu", wr=["s38", "s39"]))
A(label("L_pc"))
if opt["cpf"]:
    A(valu("v_lshlrev_b32", v(tC), 5, "v0"))
    A(raw(f"v_min_u32 v{tC}, L_slow-L_pc-32, v{tC}", "valu", rd=[v(tC)], wr=[v(tC)]))
    A(I(f"global_load_dwordx4 v[{SS+8}:{SS+11}], v{tC}, s[38:39]", "vld", rd=[v(tC), "s38", "s39"], wr=vr(SS + 8, 4)))
pro += stamp(98) + stamp(100, True)
A(valu("v_lshrrev_b32", v(tA), 6, "v0"))
A(valu("v_and_b32", v(vLane), 63, "v0"))
A(raw(f"v_readfirstlane_b32 s{sWave}, v{tA}", "rfl", rd=[v(tA)], wr=[s(sWave)]))
A(salu("s_lshr_b32", "s40", "s2", 4))
if opt["map"] == 0:
    A(salu("s_lshl_b32", "s40", "s40", 3))
    A(salu("s_and_b32", "s41", "s2", 7))
else:
    A(salu("s_and_b32", "s41", "s2", 7))
    A(salu("s_lshl_b32", "s41", "s41", 4))
A(salu("s_add_u32", "s40", "s40", "s41"))
A(salu("s_bfe_u32", "s41", "s2", 0x10003))
A(salu("s_lshl_b32", s(sKV), "s40", 16))
A(salu("s_lshl1_add_u32", "s40", "s40", "s41"))
A(salu("s_lshl_b32", s(sBase), "s40", 18))
A(salu("s_and_b32", "s40", s(sWave), 3))
A(salu("s_lshl_b32", "s41", "s40", 13))
A(salu("s_add_u32", s(sBase), s(sBase), "s41"))
A(valu("v_lshrrev_b32", v(tA), 3, v(vLane)))
A(valu("v_and_b32", v(tB), 7, v(vLane)))
A(valu("v_lshlrev_b32", v(vG), 10, v(tA)))
A(valu("v_lshl_add_u32", v(vG), v(tB), 4, v(vG)))
A(valu("v_lshrrev_b32", v(tD), 4, v(vLane)))
A(salu("s_lshl_b32", "s42", "s40", 11))
A(valu("v_lshlrev_b32", v(vKd), 8, v(tB)))
A(valu("v_lshl_add_u32", v(vKd), v(tA), 4, v(vKd)))
A(valu("v_add_u32", v(vKd), "s42", v(vKd)))
A(salu("s_lshl_b32", "s41", "s40", 10))
A(raw(f"s_cmp_lt_u32 s{sWave}, 4", "salu", rd=[s(sWave)]))
A(raw("s_waitcnt lgkmcnt(0)", "fullwait"))
if STAMP: A(raw("s_mov_b32 s3, s98")); A(raw("s_mov_b32 s46, s100"))
A(raw("s_cbranch_scc1 L_groupA", "br"))
pro_head = pro
proB0 = srd(sK, 6, KBYTES) + dma("K0") + dma("K1") + [raw("s_branch L_groupB", "br")]

def consts():
    c = []
    A = c.append
    c += srd(sO, 26, 0)
    A(salu("s_mov_b32", s(sThr), fbits(2.0 ** 32)))
    A(salu("s_lshl_b32", "s35", s(sWave), 12))
    A(salu("s_add_u32", "s35", "s35", LDS_SCR))
    A(salu("s_mov_b32", s(sScr), "s35"))
    A(valu("v_xor_b32", v(tC), v(tB), v(tD)))
    A(valu("v_lshlrev_b32", v(vQd), 8, v(tA)))
    A(valu("v_lshl_add_u32", v(vQd), v(tC), 4, v(vQd)))
    A(valu("v_xor_b32", v(vQd + 1), 64, v(vQd)))
    A(valu("v_lshlrev_b32", v(tC), 1, v(tA)))
    A(valu("v_and_b32", v(tC), 7, v(tC)))
    A(valu("v_xor_b32", v(tC), v(tC), v(tB)))
    A(valu("v_lshlrev_b32", v(vRw), 9, v(tA)))
    A(valu("v_lshl_add_u32", v(vRw), v(tC), 4, v(vRw)))
    A(valu("v_add_u32", v(vRw), "s35", v(vRw)))
    A(valu("v_and_b32", v(tA), 15, v(vLane)))
    A(valu("v_bfe_u32", v(tC), v(vLane), 1, 3))
    A(valu("v_lshlrev_b32", v(vFr), 7, v(tA)))
    A(valu("v_add_u32", v(vFr), "s35", v(vFr)))
    A(valu("v_lshlrev_b32", v(vGo), 10, v(tD)))
    A(valu("v_lshl_add_u32", v(vGo), v(tA), 4, v(vGo)))
    A(valu("v_and_b32", v(tB), 1, v(tD)))
    A(valu("v_xor_b32", v(tC), v(tC), v(tD)))
    A(valu("v_lshl_add_u32", v(vFr), v(tC), 4, v(vFr)))
    A(valu("v_xor_b32", v(vFr1), 64, v(vFr)))
    for i in range(4): A(valu("v_mov_b32", v(ONES + i), 0x3f803f80))
    A(valu("v_lshrrev_b32", v(tC), 4, v(vLane)))
    A(valu("v_xor_b32", v(tC), v(tC), v(vLane)))
    A(valu("v_and_b32", v(tC), 2, v(tC)))
    A(valu("v_lshrrev_b32", v(tC), 1, v(tC)))
    A(valu("v_add_u32", v(tC), -1, v(tC)))
    for i in range(4): A(valu("v_and_b32", v(ASP + i), 0x40804080, v(tC)))
    A(valu("v_and_b32", v(tC), 1, v(vLane)))
    A(valu("v_mul_u32_u24", v(tC), 0xaaaa, v(tC)))
    A(valu("v_add_u32", v(vIdx), 0x4444, v(tC)))
    A(valu("v_lshrrev_b32", v(tC), 3, v(tA)))
    A(valu("v_lshlrev_b32", v(vK), 10, v(tC)))
    A(valu("v_and_b32", v(tC), 7, v(vLane)))
    A(valu("v_lshl_add_u32", v(vK), v(tC), 4, v(vK)))
    A(valu("v_lshl_add_u32", v(vK), v(tD), 7, v(vK)))
    A(valu("v_bfe_u32", v(tC), v(vLane), 2, 2))
    A(valu("v_mul_u32_u24", v(vV), 288, v(tC)))
    A(valu("v_lshl_add_u32", v(vV), v(tB), 7, v(vV)))
    A(valu("v_lshrrev_b32", v(tC), 5, v(vLane)))
    A(valu("v_lshl_add_u32", v(vV), v(tC), 11, v(vV)))
    A(valu("v_and_b32", v(tC), 3, v(vLane)))
    A(valu("v_lshl_add_u32", v(vV), v(tC), 3, v(vV)))
    A(valu("v_add_u32", v(vV), LDS_V, v(vV)))
    for t in range(1, 4):
        A(valu("v_xor_b32", v(vV + t), t * 32, v(vV)))
    A(salu("s_add_u32", s(sQoff), s(sBase), TSTRIDE))
    A(salu("s_mov_b32", s(sOoff), s(sBase)))
    A(salu("s_mov_b32", s(sOoff2), s(sBase)))
    A(salu("s_mov_b32", s(sTile), 0))
    A(salu("s_mov_b32", s(sBad), 0))
    return c

proA = [label("L_groupA")] + srd(sQ, 4, QBYTES)
if opt["qa"]:
    proA += [valu("v_xor_b32", v(tC), v(tB), v(tD)), valu("v_lshlrev_b32", v(vQd), 8, v(tA)),
             valu("v_lshl_add_u32", v(vQd), v(tC), 4, v(vQd)), valu("v_xor_b32", v(vQd + 1), 64, v(vQd)),
             salu("s_lshl_b32", s(sScr), s(sWave), 12), salu("s_add_u32", s(sScr), s(sScr), LDS_SCR)]
    for j in range(4):
        for half in range(2):
            proA += [salu("s_add_u32", "m0", s(sScr), 1024 * j + 16384 * half), salu("s_add_u32", "s42", s(sBase), 2048 * j + 128 * half),
                     buf_load_lds(vQd + (j & 1), sQ, "s42", 0, QF, tag="Q0")]
else:
    proA += q_loads(T, s(sBase))
proA += stamp(56)
proA += [salu("s_mov_b32", s(sLast), NA - 1), salu("s_mov_b32", s(sCut), (99 if opt["lbm"] else 0) if LB else NA - 2),
         raw("s_mov_b64 vcc, -1", "salu", wr=["vcc"])]
proA += consts()
if opt["warm"]:
    proA += [salu("s_mov_b32", s(sQ + 2), 0), raw("s_mov_b64 vcc, 0", "salu", wr=["vcc"]), raw("s_mov_b64 exec, 0", "salu", wr=["exec"])]
    for k in range(4):
        proA += [raw(f"s_cmp_eq_u32 s40, {k}", "salu", rd=["s40"]), raw(f"s_cbranch_scc1 L_seg{2*k}", "br")]
    proA += [label("L_warm_ret"), raw("s_mov_b64 exec, -1", "salu", wr=["exec"]), raw("s_setprio 0", "salu"),
             salu("s_mov_b32", s(sQ + 2), QBYTES), salu("s_mov_b32", s(sO + 2), 0),
             salu("s_add_u32", s(sQoff), s(sBase), TSTRIDE), salu("s_mov_b32", s(sOoff), s(sBase)),
             salu("s_mov_b32", s(sBad), 0), raw("s_mov_b64 vcc, -1", "salu", wr=["vcc"])]
if opt["qa"]:
    proA += [wait_vm("Q0")] + flat(q_reads(0))
    proA += [ds_read(Qreg(qb, 2 + x), 4, (vFr, vFr1)[x], 2048 * qb + 16384) for x in range(2) for qb in range(2)]
    proA += [raw("s_waitcnt lgkmcnt(0)", "fullwait")]
else:
    proA += flat(q_writes(T, 0) + q_reads(0) + q_writes(T, 1) + q_reads(1))
def first_h0(): return flat([q_dma(0, j, vr(QC, 32) if j == 0 else ())[0] + [q_dma(0, j, vr(QC, 32) if j == 0 else ())[1]] for j in range(4)])
if opt["xq1"]: proA += [salu("s_mov_b32", s(sQ + 2), 0)]
proA += [raw("s_barrier", "bar")]
proC = [label("L_start")] + stamp(62, STAMP == 2)
for kb in range(2):
    for ds_ in range(4): proC += kfrag(0, kb, ds_)
proC += first_h0() + lzero() + [valu("v_mov_b32", v(AT + i), 0) for i in range(1, 4)]
mx = max_first16(0) + max_finish()
for m in range(16):
    proC.append(qk_mfma(0, m, False))
    if opt["k0"] and m == 4: proC.append(Cond([raw("s_barrier", "bar")]))
    if opt["peel"] and (m & 7) >= 4: proC += kfrag(1, m >> 3, m & 3)
    if m >= 10: proC += mx[(m - 10) * 2:(m - 10) * 2 + 2]
proC += mx[12:]
proB = [label("L_groupB")] + ([raw("s_setprio 3")] if opt["bprio"] else [])
A = proB.append
A(salu("s_add_u32", s(sBase), s(sBase), 5 * TSTRIDE if LB else NA * TSTRIDE))
if opt["up"] >= 3: proB += dma("K2")
A(valu("v_lshlrev_b32", v(vVd), 4, v(vLane)))
A(salu("s_lshl_b32", "s45", "s40", 11))
A(salu("s_add_u32", "s44", s(sKV), "s45"))
proB += srd(sV, 24, KBYTES)
if opt["up"] >= 4: proB += dma("V0")
for t in ["K3", "V1", "K4", "V2", "K5", "V3"][:max(0, opt["up"] - 4)]: proB += dma(t)
proB += stamp(56)
proB += srd(sQ, 4, QBYTES)
A(salu("s_mov_b32", s(sC), fbits(math.log2(math.e) / math.sqrt(128.0))))
A(raw(f"s_add_u32 s{sSub}, s38, L_kscale-L_pc", "salu", rd=["s38"], wr=[s(sSub)]))
A(raw(f"s_addc_u32 s{sSub+1}, s39, 0", "salu", rd=["s39"], wr=[s(sSub + 1)]))
A(valu("v_lshl_add_u32", v(vKs), v(vLane), 4, "s41"))
A(raw(f"s_add_u32 s{sSubV}, s38, L_vrelay-L_pc", "salu", rd=["s38"], wr=[s(sSubV)]))
A(raw(f"s_addc_u32 s{sSubV+1}, s39, 0", "salu", rd=["s39"], wr=[s(sSubV + 1)]))
A(raw(f"s_add_u32 s{sSubKV}, s38, L_kv-L_pc", "salu", rd=["s38"], wr=[s(sSubKV)]))
A(raw(f"s_addc_u32 s{sSubKV+1}, s39, 0", "salu", rd=["s39"], wr=[s(sSubKV + 1)]))
A(salu("s_add_u32", "s35", "s45", LDS_V))
A(valu("v_and_b32", v(vX), 3, v(vLane)))
A(valu("v_lshl_add_u32", v(vVr), v(vX), 6, "s35"))
A(valu("v_bfe_u32", v(tC), v(vLane), 2, 2))
A(valu("v_lshl_add_u32", v(vVr), v(tC), 4, v(vVr)))
A(valu("v_lshl_add_u32", v(vVw), v(tC), 3, "s35"))
A(valu("v_and_b32", v(tC), 1, v(tD)))
A(valu("v_lshl_add_u32", v(vVr), v(tC), 3, v(vVr)))
A(valu("v_lshl_add_u32", v(vVw), v(tC), 10, v(vVw)))
A(valu("v_lshrrev_b32", v(tC), 5, v(vLane)))
A(valu("v_lshl_add_u32", v(vVr), v(tC), 8, v(vVr)))
A(valu("v_lshl_add_u32", v(vVw), v(tC), 8, v(vVw)))
A(valu("v_xor_b32", v(tC), v(tC), v(vX)))
A(valu("v_lshl_add_u32", v(vVw), v(tC), 5, v(vVw)))
A(valu("v_xor_b32", v(vVw + 1), 64, v(vVw)))
A(valu("v_add_u32", v(vVw + 1), 512, v(vVw + 1)))
proB += [salu("s_mov_b32", s(sLast), NB - 1), salu("s_mov_b32", s(sCut), (99 if opt["lbm"] else 0) if LB else NB - 2), raw("s_mov_b64 vcc, 0", "salu", wr=["vcc"])]
proB += consts()
_bn = [0]
def lg0():
    return raw("s_waitcnt lgkmcnt(0)", "fullwait")
def bar():
    if STAMP and STAMP != 4 and not LB:
        _bn[0] += 1
        return raw(f"s_memtime s[60:61]\n    s_waitcnt lgkmcnt(0)\n    s_mov_b32 s{88 + _bn[0]}, s60\n    s_barrier", "bar")
    return raw("s_barrier", "bar")
ORD = ["K0", "K1", "K2", "V0", "K3", "V1", "K4", "V2", "K5", "V3", "K6", "V4", "K7", "V5", "V6", "V7"]
UP, MID = opt["up"], opt["mid"]
if opt["k0"]: proB += [wait_vm("K0"), Call(), lg0(), bar(), wait_vm("K1"), Call(), lg0(), bar()]
else: proB += [wait_vm("K0"), Call(), wait_vm("K1"), Call(), lg0(), bar()]
q0 = q_loads(T, s(sBase))
units = [dma(t) for t in ORD[UP:]]
proB += flat(units[:MID]); units = units[MID:]
kdone = 1; vdone = -1
for n, site in enumerate(SITES):
    nxt = SITES[n + 1] if n + 1 < len(SITES) else 8
    ks = list(range(kdone + 1, min(nxt + 1, 7) + 1)); vs = list(range(vdone + 1, nxt))
    while ks or vs:
        if ks and vs:
            kdone = ks.pop(0); vdone = vs.pop(0)
            proB += [wait_vm(f"K{kdone}", f"V{vdone}"), Call(2)]
        elif ks:
            kdone = ks.pop(0); proB += [wait_vm(f"K{kdone}"), Call()]
        else:
            vdone = vs.pop(0); proB += [wait_vm(f"V{vdone}"), Call(True)]
    proB += [lg0(), bar()]
    m = opt["per"]
    proB += flat(units[:m]); units = units[m:]
    if site == opt["q0at"]:
        assert not units
        proB += q0
proB += flat(q_writes(T, 0) + q_reads(0) + q_writes(T, 1) + q_reads(1))
proB += [raw("s_setprio 0"), raw("s_branch " + ("L_end" if LB == 1 else "L_start"), "br")]
proB_st, proB_tr = flatten(proB)

peel = []
if opt["peel"]:
    peel = make_step(0, True) + make_step(1, True) + [raw("s_branch L_seg2", "br")]
steps = []
for kt in range(8):
    if kt == 2: n2 = len(steps)
    steps += make_step(kt)
steps += [salu("s_add_u32", s(sTile), s(sTile), 1)]
steps += [raw("s_branch L_seg0", "br")]
body_st, body_tr0 = flatten(steps, first=True)
body_tr = flatten(steps)[1]
body_trl = flatten(steps, last=True)[1]

import copy
tail = [label("L_seg8")]
tail += stamp(58, STAMP == 2)
for dt in range(8): tail += vfrag(7, dt)
tail += [copy.copy(x) for x in SM7_REST]
tail += [l_mfma(1)]
pv = [pv_mfma(1, m, False) for m in range(16)]
def pack_row(qb, r):
    o = []
    for j in range(4):
        a, b = Oreg(2 * j, qb) + r, Oreg(2 * j + 1, qb) + r
        o += [valu("v_mul_f32", v(a), v(a), v(LI + 4 * qb + r)), valu("v_mul_f32", v(b), v(b), v(LI + 4 * qb + r))]
    for j in range(4):
        o.append(valu("v_cvt_pk_bf16_f32", v(T + 16 * qb + 4 * r + j), v(Oreg(2 * j, qb) + r), v(Oreg(2 * j + 1, qb) + r)))
    return o + [o_stores()[4 * qb + r]]
pv0, pv1 = pv[0::2], pv[1::2]
h, s0, m0, s1, m1 = lred()
tail += pv0[:4] + h[:2] + [pv0[4]] + h[2:5] + [pv0[5]] + h[5:] + s0[:2] + [pv0[6]] + s0[2:] + [pv0[7]] + m0 + s1[:2] + [pv1[0]] + s1[2:] + [pv1[1]] + m1
p0 = flat([pack_row(0, r) for r in range(4)])
k = 0
for m in range(2, 8):
    tail += [pv1[m]] + p0[k:k + 4]; k += 4
tail += p0[k:] + flat([pack_row(1, r) for r in range(4)]) + bad_update()[0]
if STAMP:
    tail += [raw("s_waitcnt vmcnt(0) lgkmcnt(0)", "fullwait")] + stamp(24) + stamp(26, True)
    tail += [raw("s_load_dwordx2 s[6:7], s[0:1], 40", "smem"), raw("s_waitcnt lgkmcnt(0)", "fullwait"),
             raw("s_mov_b32 s96, s62"),
             raw("s_mov_b32 s8, s6"), raw("s_and_b32 s9, s7, 0xffff"), raw("s_mov_b32 s10, 0x10000000"), raw("s_mov_b32 s11, 0x20000"),
             raw(f"s_lshl_b32 s35, s2, 3"), raw(f"s_add_u32 s35, s35, s{sWave}"), raw("s_mul_i32 s35, s35, 192"),
             raw("s_getreg_b32 s97, hwreg(HW_REG_HW_ID)"), raw("v_mov_b32 v32, 0", "valu")]
    regs = [3, 46, 56, 56, 58, 58, 24, 26] + list(range(64, 102))
    for i, r in enumerate(regs):
        if STAMP == 4 and i not in (1, 7): continue
        tail += [raw(f"v_mov_b32 v33, s{r}", "valu"), raw(f"buffer_store_dword v33, v32, s[8:11], s35 offen offset:{4*i}", "vst"), raw("s_nop 1")]
tail += [salu("s_lshl_b32", "s41", 1, s(sLast)), salu("s_lshl_b32", "s40", "s41", 1), salu("s_sub_u32", "s40", "s40", 1),
         salu("s_and_b32", s(sBad), s(sBad), "s40"), raw("s_cbranch_scc1 " + ("L_end" if BROKEN or STAMP else "L_slow"), "br"),
         label("L_end"), raw("s_endpgm", "br")]
ool = []
for c in Cond.blocks: ool += flatten(c.ool)[0]
ool += kscale + vrelay + kvsub

vD, vD1, vKa, vVa = T, T + 1, T + 2, T + 4
slow_pre = [label("L_slow"), raw("s_waitcnt vmcnt(0) lgkmcnt(0)", "fullwait"),
            salu("s_mov_b32", s(sQ + 2), QBYTES),
            raw(f"v_mbcnt_lo_u32_b32 v{vD}, -1, 0", "valu", wr=[v(vD)]),
            raw(f"v_mbcnt_hi_u32_b32 v{vD}, -1, v{vD}", "valu", rd=[v(vD)], wr=[v(vD)]),
            valu("v_lshrrev_b32", v(vX), 4, v(vD)),
            valu("v_and_b32", v(vD), 15, v(vD)),
            valu("v_lshlrev_b32", v(vD), 8, v(vD)),
            valu("v_lshl_add_u32", v(vD), v(vX), 4, v(vD)),
            salu("s_mov_b32", "s40", s(sBase))]
st_head = [label("L_slow_tile"),
           raw(f"s_and_b32 s42, s{sBad}, s41", "salu", rd=[s(sBad), "s41"], wr=["s42"]),
           raw("s_cbranch_scc0 L_slow_next", "br")]
st_a = [salu("s_add_u32", "s39", "s40", 4096)]
st_a += [buf_load(Qreg(qb, ds_), 4, vD, sQ, ("s40", "s39")[qb], ds_ * 64) for qb in range(2) for ds_ in range(4)]
st_a += [valu("v_mov_b32", v(vMa), 0xff800000), valu("v_mov_b32", v(vMb), 0xff800000),
         valu("v_mov_b32", v(vKa), v(vK)), salu("s_mov_b32", "s35", 0)]
def slow_qk(shifted):
    o = []
    for kb in range(2):
        for ds_ in range(4): o += kfrag(0, kb, ds_, vKa)
    return o + [qk_mfma(0, m, shifted) for m in range(16)]
def slow_loop(lbl):
    return [salu("s_add_u32", "s35", "s35", 1), raw("s_cmp_lt_u32 s35, 8", "salu", rd=["s35"]), raw(f"s_cbranch_scc1 {lbl}", "br")]
p1 = [label("L_slow_p1")] + slow_qk(False)
for i in range(0, 8, 2):
    for qb in range(2):
        p1.append(valu("v_max3_f32", v((vMa, vMb)[qb]), v((vMa, vMb)[qb]), v(Sreg(0, i >> 2, qb) + (i & 3)), v(Sreg(0, i >> 2, qb) + (i & 3) + 1)))
p1 += [valu("v_add_u32", v(vKa), 8192, v(vKa))] + slow_loop("L_slow_p1")
st_b = max_finish() + lzero() + [valu("v_mov_b32", v(vKa), v(vK)),
                       salu("s_mov_b32", "s35", 0)]
st_b += [valu("v_mov_b32", v(vVa + t), v(vV + t)) for t in range(4)]
st_b += [valu("v_mov_b32", v(O + i), 0) for i in range(64)]
p2 = [label("L_slow_p2")] + slow_qk(True)
for dt in range(8): p2 += vfrag(0, dt, vVa)
p2 += softmax_stream(0, False) + [l_mfma(0)] + [pv_mfma(0, m, False) for m in range(16)]
p2 += [valu("v_add_u32", v(vKa), 8192, v(vKa))] + [valu("v_add_u32", v(vVa + t), 8192, v(vVa + t)) for t in range(4)]
p2 += slow_loop("L_slow_p2")
st_c = flat(lred(check=False)) + pack_stream(0, 8, T + 8 if False else FR) + o_stores(FR, ("s40", "s39"))
st_next = [label("L_slow_next"), salu("s_add_u32", "s40", "s40", TSTRIDE), salu("s_lshr_b32", "s41", "s41", 1),
           raw("s_cbranch_scc1 L_slow_tile", "br"), raw("s_endpgm", "br")]
slow = slow_pre + st_head + st_a + p1 + st_b + p2 + st_c + st_next

one = st_head + st_a + p1 + p1 + p1 + st_b + p2 + p2 + p2 + st_c + st_next
if opt["peel"]:
    t0A = flatten(peel + steps[n2:], first=True)[1]; t0B = flatten(peel + steps[n2:])[1]
else:
    t0A = body_tr0; t0B = body_tr
trA = pro_head + proA + flatten(proC, first=True)[1] + t0A + body_tr + body_tr + body_trl + tail + slow_pre + one + one
trB = pro_head + proB0 + proB_tr + flatten(proC)[1] + t0B + body_tr + body_trl + tail
for _ in range(2):
    analyze_waits(trA); analyze_waits(trB)
analyze_hazards(trA); analyze_hazards(trB); analyze_hazards(trA)
prog = pro_head + proB0 + proA + flatten(proC)[0] + flatten(peel)[0] + body_st + tail + ool + proB_st + slow

hdr = """; GQA attention, B32 Hq32 Hkv4 Sq256 Sk256 D128 bf16.  Generated by my own generator script (gen27.py).
; One persistent 512-thread workgroup per CU: K (pre-scaled by log2(e)/sqrt(D)) and V of one kv head live in LDS,
; @launch grid=(256,1,1) block=(512,1,1) lds=163840
.amdgcn_target "amdgcn-amd-amdhsa--gfx950"
.text
.globl standalone__gqa_softmax__near_ridge_kernel
.p2align 8
.type standalone__gqa_softmax__near_ridge_kernel,@function
standalone__gqa_softmax__near_ridge_kernel:
"""
ftr = """
.section .rodata,"a"
.p2align 6
.amdhsa_kernel standalone__gqa_softmax__near_ridge_kernel
  .amdhsa_next_free_vgpr 256
  .amdhsa_next_free_sgpr 102
  .amdhsa_accum_offset 256
  .amdhsa_group_segment_fixed_size 0
  .amdhsa_kernarg_size 48
  .amdhsa_user_sgpr_count 2
  .amdhsa_user_sgpr_kernarg_segment_ptr 1
  .amdhsa_system_sgpr_workgroup_id_x 1
.end_amdhsa_kernel
"""
body = emit(prog)
if opt['al']: body = align_pass(body, opt['al'])
print(hdr + body + ftr)
```

```python
import sys, struct, math
from asmlib import *

opt = dict(qf="nt", kvf="", of="sc1", prio=5, stamp=0, warm=0, cpf=1, xsm="", xnolds=0, early=1, nsite=8, na=5, pk0=5, pks=13, al=0, up=6, mid=2, per=4, lbm=0, qsite=-1, bprio=1, sites="0135", q0at=3, aup="", aconf=1, lim=0, pre=0, q1="", oft="sc1", qko=0, swp=0, dsub=0, hs=2, h0site=-1, rot=0, xdelay=0, lv="00332211", xq1=0, peel=1, map=0, k0=0, qa=1, lb=0, drop="")
for a in sys.argv[1:]:
    k, v = a.split("=")
    opt[k] = int(v) if v.lstrip("-").isdigit() and k not in ("sites", "lv", "q1") else v.replace("+", " ")
QF, KVF, OF = opt["qf"], opt["kvf"], opt["of"]
BROKEN = bool(opt["xsm"] or opt["xnolds"])

def fbits(x): return struct.unpack("<I", struct.pack("<f", x))[0]

vX, vK, vV, vFr, vGo, vQd, vMa, vMb, ONES, NM, vL = 0, 1, 2, 6, 7, 8, 10, 11, 12, 16, 24
vRw, vG, vFr1 = 112, 113, 114
QN = 96
ASP, LI, AT, vIdx = 28, 116, 124, 115
sScr = 47
vKs, vVr, vVw = vL, vL + 1, vL + 2
FR, QC, QR, T, SS, O = 32, 64, 96, 128, 160, 192
sQ, sK, sV, sO = 8, 12, 16, 20
sC, sThr, sTile, sQoff, sOoff, sBad, sWave, sBase, sKV = 28, 29, 30, 31, 32, 33, 34, 36, 37
sSubKV = 100
sRet, sSub, sSubV, sChk, sLast, sCut, sOoff2 = 52, 54, 50, 48, 43, 38, 39
QBYTES, KBYTES = 64 << 20, 8 << 20
LDS_V, LDS_SCR = 65536, 131072
NS = 33
TSTRIDE = 32768
NA = opt['na']; NB = 8 - NA
LB = opt['lb']
if LB: NA = NB = 24; BROKEN = True
if 0: pass

def v(n): return f"v{n}"
def s(n): return f"s{n}"
def Sreg(sb, kb, qb): return SS + 16 * sb + 8 * kb + 4 * qb
def Preg(sb, qb): return SS + 16 * sb + 4 * qb
def Oreg(dt, qb): return O + (dt * 2 + qb) * 4
def Qreg(qb, ds): return QC + (qb * 4 + ds) * 4

def kfrag(kt, kb, ds, addr=vK):
    return [ds_read(FR + 4 * (4 * kb + ds), 4, addr, kt * 8192 + (ds >> 1) * 4096 + kb * 2048 + (ds & 1) * 512)]
def vfrag(kt, dt, addr=vV):
    o = kt * 8192 + (dt >> 2) * 1024
    return [ds_read(FR + 4 * dt, 2, addr + (dt & 3), o, tr=True),
            ds_read(FR + 4 * dt + 2, 2, addr + (dt & 3), o + 4096, tr=True)]
def qk_mfma(sb, m, shifted):
    kb, qb, ds = m >> 3, (m >> 2) & 1, m & 3
    if opt["qko"]: qb, ds = m & 1, (m >> 1) & 3
    d = Sreg(sb, kb, qb)
    c = d if ds else (NM + 4 * qb if shifted else None)
    return mfma16(d, FR + 4 * (4 * kb + ds), Qreg(qb, ds), c)
def pv_mfma(sb, m, first):
    dt, qb = m >> 1, m & 1
    return mfma16(Oreg(dt, qb), Preg(sb, qb), FR + 4 * dt, None if first else Oreg(dt, qb))

def l_mfma(sb):
    p = Preg(sb, 0)
    i = I(f"v_smfmac_f32_16x16x64_bf16 {V(vL,4)}, {V(ASP,4)}, {V(p,8)}, v{vIdx}", "mfma",
          rd=vr(ASP, 4) + vr(p, 8) + vr(vL, 4) + [v(vIdx)], wr=vr(vL, 4), a=vr(ASP, 4) + [v(vIdx)], b=vr(p, 8), c=vr(vL, 4))
    i.passes = 4
    return i

def softmax_stream(sb, first):
    pairs = [(kb, qb, h) for kb in range(2) for qb in range(2) for h in range(2)]
    out = []; seen = set()
    lag = 1 if first else 0
    for p in range(8 + 1 + lag):
        if first and p < 8:
            kb, qb, h = pairs[p]; r = Sreg(sb, kb, qb) + 2 * h
            out.append(valu("v_add_f32", v(r), v(r), v(NM + 4 * qb)))
            out.append(valu("v_add_f32", v(r + 1), v(r + 1), v(NM + 4 * qb)))
        if lag <= p < 8 + lag:
            kb, qb, h = pairs[p - lag]; r = Sreg(sb, kb, qb) + 2 * h
            out.append(trans("v_exp_f32", v(r), v(r)))
            out.append(trans("v_exp_f32", v(r + 1), v(r + 1)))
        if p >= 1 + lag:
            kb, qb, h = pairs[p - 1 - lag]; r = Sreg(sb, kb, qb) + 2 * h
            out.append(valu("v_cvt_pk_bf16_f32", v(Preg(sb, qb) + 2 * kb + h), v(r), v(r + 1)))
    for x in opt["xsm"].split(","):
        if x: out = [i for i in out if not i.text.startswith(x)]
    return out

def xreduce(op, a, b, ra, rb):
    return [permswap(a, b), valu(op, v(ra), v(a), v(b)), valu("v_mov_b32", v(rb), v(ra)),
            permswap16(ra, rb), valu(op, v(ra), v(ra), v(rb)), valu("v_mov_b32", v(rb), v(ra)),
            permswap(ra, rb)]
def max_first16(sb):
    a, b = Sreg(sb, 0, 0), Sreg(sb, 0, 1)
    return [valu("v_max3_f32", v(vMa), v(a), v(a + 1), v(a + 2)), valu("v_max_f32", v(vMa), v(vMa), v(a + 3)),
            valu("v_max3_f32", v(vMb), v(b), v(b + 1), v(b + 2)), valu("v_max_f32", v(vMb), v(vMb), v(b + 3))]
def max_finish():
    return xreduce("v_max_f32", vMa, vMb, vMa, vMb) + \
        [valu("v_sub_f32", v(NM + i), 0, v((vMa, vMb)[i >> 2])) for i in range(8)]
def lred(check=True):
    head = [valu("v_add_f32", v(vMa), v(vL), v(vL + 1)), valu("v_add_f32", v(vMb), v(vL + 2), v(vL + 3))]
    if check:
        head += [valu("v_max_f32", v(vX), v(vMa), v(vMb)),
                 raw(f"v_cmp_nge_f32_e64 s[{sChk}:{sChk+1}], s{sThr}, v{vX}", "valu", rd=[s(sThr), v(vX)], wr=sr(sChk, 2))]
    head += [trans("v_rcp_f32", v(vMa), v(vMa)), trans("v_rcp_f32", v(vMb), v(vMb))]
    def split(x):
        return [valu("v_cvt_pk_bf16_f32", v(vX), v(x), v(x)), valu("v_and_b32", v(vX), 0xffff0000, v(vX)),
                valu("v_sub_f32", v(vX), v(x), v(vX)), valu("v_cvt_pk_bf16_f32", v(AT), v(x), v(vX))]
    return head, split(vMa), [mfma16(LI, AT, ONES, None)], split(vMb), [mfma16(LI + 4, AT, ONES, None)]
def lzero(): return [valu("v_mov_b32", v(vL + i), 0) for i in range(4)]
def bad_update():
    return [[raw(f"s_cmp_lg_u64 s[{sChk}:{sChk+1}], 0", "salu", rd=sr(sChk, 2)),
             raw(f"s_addc_u32 s{sBad}, s{sBad}, s{sBad}", "salu", rd=[s(sBad)], wr=[s(sBad)])]]

def pack_stream(u0, u1, dst=T):
    out = []; pend = []
    for u in range(u0, u1):
        j, qb = u >> 1, u & 1
        a, b = Oreg(2 * j, qb), Oreg(2 * j + 1, qb)
        for r in range(4):
            out.append(valu("v_mul_f32", v(a + r), v(a + r), v(LI + 4 * qb + r)))
            out.append(valu("v_mul_f32", v(b + r), v(b + r), v(LI + 4 * qb + r)))
            out += pend
            pend = [valu("v_cvt_pk_bf16_f32", v(dst + 16 * qb + 4 * r + j), v(a + r), v(b + r))]
    return out + pend

def xaddr(base, x):
    if x == 0: return [], base
    return [valu("v_xor_b32", v(vX), x, v(base))], vX
def o_stores(src=T, so=None, fl=None):
    so = so or (s(sOoff), s(sOoff2))
    return [buf_store(src + 16 * qb + 4 * r, 4, vGo, sO, so[qb], r * 256, OF if fl is None else fl) for qb in range(2) for r in range(4)]
def q_writes(src, half):
    pre, a = xaddr(vRw, 16)
    return [[ds_write(vRw, src + 16 * half, 4, 0)], [ds_write(vRw, src + 16 * half + 4, 4, 128)],
            pre + [ds_write(a, src + 16 * half + 8, 4, 256)], [ds_write(a, src + 16 * half + 12, 4, 384)]]
def q_reads(half, dst=None):
    d = lambda qb, x: Qreg(qb, 2 * half + x) if dst is None else dst + 8 * qb + 4 * x
    return [[ds_read(d(qb, x), 4, (vFr, vFr1)[x], 2048 * qb)] for x in range(2) for qb in range(2)]
def q_dma(half, j, after=()):
    i = buf_load_lds(vQd + (j & 1), sQ, "s42", 0, QF, tag=f"QH{half}")
    i.also |= set(after)
    return [salu("s_add_u32", "m0", s(sScr), 1024 * j), salu("s_add_u32", "s42", s(sQoff), 2048 * j + 128 * half)], i
def q_movs():
    return [valu("v_mov_b32", v(Qreg(qb, 0) + i), v(QN + 8 * qb + i)) for qb in range(2) for i in range(8)]
def flat(ll): return [x for l in ll for x in l]
def q_loads(dst, soff):
    return [buf_load(dst + 16 * half + 4 * j, 4, vG, sQ, soff, j * 256 + half * 128, QF)
            for half in range(2) for j in range(4)]

class Cond:
    blocks = []
    ninl = 0
    def __init__(self, body, inline=False):
        self.inline = inline
        if inline:
            Cond.ninl += 1
            self.head = [raw(f"s_cbranch_vccz L_inl{Cond.ninl}", "br"), label(f"L_inl{Cond.ninl}")]
            self.ool = body
            return
        n = len(Cond.blocks)
        self.head = [raw(f"s_cbranch_vccnz L_sync{n}", "br"), label(f"L_back{n}")]
        self.ool = [label(f"L_sync{n}")] + body + [raw(f"s_branch L_back{n}", "br")]
        Cond.blocks.append(self)
class Cond2(Cond):
    def __init__(self, body):
        self.inline = True; self.neg = True
        self.head = [raw("s_cbranch_vccnz L_c2", "br"), label("L_c2")]
        self.ool = body
class Guard:
    n = 0
    def __init__(self, body):
        Guard.n += 1
        on = bool(opt["warm"])
        self.head = [raw(f"s_cbranch_execz L_g{Guard.n}", "br")] if on else []
        self.body = body
        self.tail = [label(f"L_g{Guard.n}")] if on else []
class Call:
    def __init__(self, isv=False):
        self.isv = isv
        t = {False: sSub, True: sSubV, 2: sSubKV, 3: 26}[isv]
        self.head = [raw(f"s_swappc_b64 s[{sRet}:{sRet+1}], s[{t}:{t+1}]", "br")]
def wexit(on=True):
    return [raw("s_cbranch_execz L_warm_ret", "br")] if opt["warm"] and on else []

def spread(gaps, stream, g0, g1):
    n = g1 - g0 + 1
    for i, ins in enumerate(stream):
        g = gaps[g0 + (i * n) // len(stream)]
        if isinstance(ins, list): g += ins
        else: g.append(ins)

vKd, vVd = QR + 28, QR + 29
def dma(tag, inline=True):
    kt = int(tag[1]); out = []
    for h in range(2):
        if tag[0] == "V":
            out += [salu("s_add_u32", "m0", "s45", kt * 8192 + h * 1024), salu("s_add_u32", "s42", "s44", kt * 8192 + h * 1024),
                    buf_load_lds(vVd, sV, "s42", 0, KVF, tag=tag)]
        else:
            out += [salu("s_add_u32", "m0", "s41", kt * 8192 + h * 4096), salu("s_add_u32", "s42", s(sKV), kt * 8192 + h * 128),
                    buf_load_lds(vKd, sK, "s42", 0, KVF, tag=tag)]
    return out
AUP = [opt["aup"][i:i + 2] for i in range(0, len(opt["aup"]), 2)]
def a_sync(last):
    return [raw("s_barrier", "bar")] + ([raw("s_mov_b64 vcc, 0", "salu", wr=["vcc"])] if last else [])

KT, KD, CM, vKw = O, O + 32, O + 48, O + 52
kscale = [label("L_kscale")] + [ds_read(KT + 4 * i, 4, vKs, (i & 1) * 512 + (i >> 1) * 4096) for i in range(4)]
kscale += [mfma16(KD + 4 * i, CM, KT + 4 * i, None) for i in range(4)]
kscale += [valu("v_add_u32", v(vKs), 8192, v(vKs))]
for i in range(4):
    kscale += [valu("v_cvt_pk_bf16_f32", v(KT + 2 * i), v(KD + 4 * i), v(KD + 4 * i + 1)),
               valu("v_cvt_pk_bf16_f32", v(KT + 2 * i + 1), v(KD + 4 * i + 2), v(KD + 4 * i + 3)),
               ds_write(vKw, KT + 2 * i, 2, (i & 1) * 512 + (i >> 1) * 4096)]
kscale += [valu("v_add_u32", v(vKw), 8192, v(vKw)), raw(f"s_setpc_b64 s[{sRet}:{sRet+1}]", "br")]

VT = O + 16
vrelay = [label("L_vrelay")] + [ds_read(VT + 2 * j, 2, vVr, 512 * j, tr=True) for j in range(4)]
vw = [ds_write(vVw + (j & 1), VT + 2 * j, 2, 128 * (j >> 1)) for j in range(4)]
vw[0].also |= set(vr(VT, 8))
vrelay += vw + [valu("v_add_u32", v(vVr), 8192, v(vVr)), valu("v_add_u32", v(vVw), 8192, v(vVw)),
                valu("v_add_u32", v(vVw + 1), 8192, v(vVw + 1)), raw(f"s_setpc_b64 s[{sRet}:{sRet+1}]", "br")]

def _cp(l):
    import copy
    out = []
    for x in l:
        y = copy.copy(x); y.also = set(x.also); out.append(y)
    return out
kvsub = [label("L_kv")] + _cp(kscale[1:5]) + _cp(vrelay[1:5]) + _cp(kscale[5:10]) + _cp(vrelay[5:12]) + _cp(kscale[10:])

KT2, KD2, VT2 = QC, QC + 16, FR
kv2 = [label("L_kv2")]
for kt_, vt_, o in ((KT, VT, 0), (KT2, VT2, 8192)):
    kv2 += [ds_read(kt_ + 4 * i, 4, vKs, o + (i & 1) * 512 + (i >> 1) * 4096) for i in range(4)]
for kt_, vt_, o in ((KT, VT, 0), (KT2, VT2, 8192)):
    kv2 += [ds_read(vt_ + 2 * j, 2, vVr, o + 512 * j, tr=True) for j in range(4)]
for kt_, kd_ in ((KT, KD), (KT2, KD2)):
    kv2 += [mfma16(kd_ + 4 * i, CM, kt_ + 4 * i, None) for i in range(4)]
for vt_, o in ((VT, 0), (VT2, 8192)):
    w = [ds_write(vVw + (j & 1), vt_ + 2 * j, 2, o + 128 * (j >> 1)) for j in range(4)]
    w[0].also |= set(vr(vt_, 8)); kv2 += w
for kt_, kd_, o in ((KT, KD, 0), (KT2, KD2, 8192)):
    for i in range(4):
        kv2 += [valu("v_cvt_pk_bf16_f32", v(kt_ + 2 * i), v(kd_ + 4 * i), v(kd_ + 4 * i + 1)),
                valu("v_cvt_pk_bf16_f32", v(kt_ + 2 * i + 1), v(kd_ + 4 * i + 2), v(kd_ + 4 * i + 3)),
                ds_write(vKw, kt_ + 2 * i, 2, o + (i & 1) * 512 + (i >> 1) * 4096)]
kv2 += [valu("v_add_u32", v(r), 16384, v(r)) for r in (vKs, vKw, vVr, vVw, vVw + 1)] + [raw(f"s_setpc_b64 s[{sRet}:{sRet+1}]", "br")]
sSubKV2 = 26

STAMP = opt["stamp"]
def stamp(reg, real=False):
    if STAMP == 4 and reg not in (100, 58): return []
    return [raw(f"s_mem{'real' if real else ''}time s[{reg}:{reg+1}]", "smem")] if STAMP else []

def frag_reads(kt):
    k1, vp = (kt + 1) % 8, (kt - 1) % 8
    r = {0: vfrag(vp, 6), 2: vfrag(vp, 7)}
    for g, (kb, ds_) in zip(range(4, 20, 2), [(kb, d) for kb in range(2) for d in range(4)]):
        r[g] = kfrag(k1, kb, ds_)
    for dt in range(6): r[22 + 2 * dt] = vfrag(kt, dt)
    return r
HS = opt['hs']
QD_AT = [(7, 14), (7, 16), (7, 18), (7, 20), (HS + 1, 4), (HS + 1, 10), (HS + 1, 14), (HS + 1, 18)]
OST_AT = [(1, 20), (2, 6), (4, 6), (4, 20), (5, 6), (5, 20), (6, 6), (6, 20)]
WAITGRP = {0: (0, 16), 9: (16, 16), 17: (0, 16), 25: (16, 16)}
EGAPS = list(range(1, 33, 2))

def cost(i):
    if isinstance(i, Cond): return 0
    if isinstance(i, Guard): return sum(cost(x) for x in i.body)
    return {"trans": 2, "perm": 2, "dsw": 4, "vld": 2, "dma": 2, "vst": 3, "salu": 0, "smem": 0, "waitvm": 1, "mfma": 4}.get(i.kind, 1)

class Step:
    def __init__(self):
        self.sa = [[] for _ in range(NS)]
        self.ex = [[] for _ in range(NS)]
        self.ds = [[] for _ in range(NS)]
        self.va = [[] for _ in range(NS)]
    def load(self, g):
        n = sum(cost(i) for l in (self.ex[g], self.ds[g], self.va[g]) for i in l)
        n += max(0, len(self.sa[g]) - 1) + (1 if (g + 1) % NS in WAITGRP else 0)
        if self.ex[g] and self.ds[g]: n += 2
        return n
    def place(self, items):
        import functools
        base = [self.load(g) for g in range(NS)]
        pen = lambda x: 10 * max(0, x - 2) ** 2 + x * x * 0.01
        @functools.lru_cache(None)
        def best(k, g, add):
            if k == len(items): return (pen(base[g] + add) - pen(base[g]), ())
            ins, lo, hi = items[k]
            res = (1e18, ())
            if lo <= g <= hi:
                c, p = best(k + 1, g, add + cost(ins)); res = (c, (g,) + p)
            if g < hi:
                c, p = best(k, g + 1, 0); c += pen(base[g] + add) - pen(base[g])
                if c < res[0] - 1e-9: res = (c, p)
            return res
        c, pl = best(0, items[0][1], 0)
        assert c < 1e17
        for (ins, _, _), g in zip(items, pl): self.va[g].append(ins)
    def softmax(self, sb, first, egaps=EGAPS, last=NS - 1):
        st = softmax_stream(sb, first)
        ex = [i for i in st if i.kind == "trans"]
        where = {}
        for i, g in zip(ex, egaps):
            self.ex[g].append(i); where[next(iter(i.wr))] = g
        adds = [(i, 0, where[next(iter(i.wr))] - 1) for i in st if i.text.startswith("v_add")]
        cv = [(i, max(where[r] for r in i.rd) + 1, last) for i in st if i.text.startswith("v_cvt")]
        if adds: self.place(adds)
        if cv: self.place(cv)
    def gap(self, g):
        if self.ex[g] or g == NS - 1: return self.sa[g] + self.ex[g] + self.va[g] + self.ds[g]
        return self.sa[g] + self.ds[g] + self.va[g]

def window(stream, lo, hi): return [(i, lo, hi) for i in stream]
def pack_items(u0, u1, step):
    out = []
    for ins in pack_stream(u0, u1):
        acc = [(int(x[1:]) - O) // 4 for x in ins.rd if int(x[1:]) >= O]
        out.append((ins, max(min(7 + max(acc), NS - 1), opt["pks"]), NS - 1) if step == 0 else (ins, 0, min(acc)))
    return out

SM7_REST = []
SITES = [int(c) for c in str(opt["sites"]).zfill(1)]
def first_h0(): return flat([q_dma(0, j, vr(QC, 32) if j == 0 else ())[0] + [q_dma(0, j, vr(QC, 32) if j == 0 else ())[1]] for j in range(4)])
def make_step(kt, first=False):
    S_ = Step(); sa, ds = S_.sa, S_.ds
    if STAMP and STAMP != 4 and (not LB or STAMP == 3):
        cur, prev = (60, 62) if kt % 2 == 0 else (62, 60)
        sa[19] += stamp(cur, STAMP == 2)
        sa[19] += [raw(f"s_min_u32 s35, s{sTile}, 3"), raw(f"s_lshl_b32 s35, s35, 3"), raw(f"s_add_u32 m0, s35, {kt}"), raw("s_nop 0"), raw(f"s_movreld_b32 s64, s{prev}")]
        if kt == 0: sa[19] += stamp(4, True)
        if kt == 1: sa[19] += [raw(f"s_min_u32 m0, s{sTile}, 3"), raw("s_nop 0"), raw(f"s_movreld_b32 s98, s4")]
    if LB and STAMP != 3 and kt == 0:
        sa[19] += stamp(60, STAMP == 2) + [raw(f"s_mov_b32 m0, s{sTile}"), raw("s_nop 0"), raw(f"s_movreld_b32 s64, s62"), raw("s_nop 0")]
    if LB and STAMP != 3 and kt == 4:
        sa[19] += [raw("s_mov_b32 s62, s60")]
    Q1 = [int(c) for c in opt["q1"]]
    if (kt in SITES or kt in Q1 or (Q1 and kt == 6)) and (first or kt >= 2 or not opt["peel"]):
        body = [wait_vm(*AUP)] if AUP and kt == opt['aconf'] else []
        if kt in SITES: body += [raw("s_barrier", "bar")]
        if kt == opt["h0site"]: body += first_h0()
        if kt in Q1:
            n = 8 // len(Q1); j = Q1.index(kt)
            body += [buf_load(T + 16 * half + 4 * jj, 4, vG, sK, s(sQoff), jj * 256 + half * 128, QF)
                     for half in range(2) for jj in range(4)][n * j:n * j + n]
        if Q1 and kt == 6:
            body += flat(q_writes(T, 0) + q_reads(0, QN) + q_writes(T, 1)) + [salu("s_mov_b32", s(sQ + 2), QBYTES)]
        if kt == (6 if Q1 else SITES[-1]): body += [raw("s_mov_b64 vcc, 0", "salu", wr=["vcc"])]
        sa[21].append(Cond(body, inline=first))
    if not opt["xnolds"]:
        for g, l in frag_reads(kt).items(): ds[g] += l
    if opt["prio"] == 1:
        sa[1].append(raw(f"s_setprio {3 - (2 * kt) % 4}")); sa[17].append(raw(f"s_setprio {3 - (2 * kt + 1) % 4}"))
    if opt["prio"] == 3:
        if kt == 7: sa[27].append(raw("s_setprio 0"))
        if kt == 1: sa[19].append(raw("s_setprio 2"))
    if opt["prio"] == 4:
        if kt == 6: sa[9].append(raw("s_setprio 0"))
        if kt == 2: sa[19].append(raw("s_setprio 2"))
    if opt["prio"] == 5:
        lv = opt["lv"]
        if lv[kt] != lv[kt - 1] and not (first and kt == 0): sa[1].append(raw(f"s_setprio {lv[kt]}"))
    if opt["prio"] == 2:
        for j, g in enumerate((1, 9, 17, 25)): sa[g].append(raw(f"s_setprio {3 - j}"))
    for i, (k2, g2) in enumerate(QD_AT):
        if k2 == kt:
            after = () if i & 3 else (vr(QN, 16) if i == 4 else [r for qb in range(2) for r in vr(Qreg(qb, 2), 8)])
            pre, ld = q_dma(i >> 2, i & 3, after)
            sa[g2 - 1] += pre[:1]; sa[g2] += pre[1:]; ds[g2].append(ld)
    for i, (k2, g2) in enumerate(OST_AT):
        if k2 == kt: ds[g2].append(o_stores()[i])
    if first and kt == 0:
        spread(S_.va, softmax_stream(0, True), 17, 32)
    elif first:
        S_.softmax(1, False)
    elif kt == 0:
        sa[13] += bad_update()[0]
        S_.softmax(0, True)
        h, s0, m0, s1, m1 = lred()
        S_.place(window(h, 3, 6) + window(s0, 6, 8) + window(m0, 8, 8) + window(s1, 8, 10) + window(m1, 10, 10) + window(lzero(), 10, 14))
        S_.place(pack_items(0, opt["pk0"], 0))
    elif kt == 1:
        S_.softmax(1, False)
        S_.place(pack_items(opt["pk0"], 8, 1))
    elif kt == HS:
        rd = q_reads(0, QN)
        ds[12] += [Guard([wait_vm("QH0")])] + rd[0]; ds[14] += rd[1]; ds[16] += rd[2]; ds[18] += rd[3]
        S_.softmax(kt % 2, False)
    elif kt == 6:
        pass
    if kt == 6:
        sa[13] += [salu("s_add_u32", s(sQoff), s(sQoff), 0 if LB else TSTRIDE)]
        sa[15] += [raw(f"s_cmp_ge_u32 s{sTile}, s{sCut}", "salu", rd=[s(sTile), s(sCut)]),
                   raw(f"s_cselect_b32 s{sQ+2}, 0, s{sQ+2}", "salu", rd=[s(sQ + 2)], wr=[s(sQ + 2)])]
        sa[23] += [salu("s_mov_b32", s(sO + 2), 0 if LB and opt["lbm"] < 2 else QBYTES)]
        sa[25] += [salu("s_lshl_b32", s(sOoff), 0 if LB else s(sTile), 15)]
        sa[27] += [salu("s_add_u32", s(sOoff), s(sOoff), s(sBase))]
        sa[29] += [salu("s_add_u32", s(sOoff2), s(sOoff), 4096)]
        S_.softmax(0, False)
    elif first or kt in (0, 1, HS):
        pass
    elif kt == 7:
        rd = q_reads(1)
        ds[4] += [Guard([wait_vm("QH1")])] + rd[0]; ds[6] += rd[1]; ds[8] = rd[2] + rd[3] + ds[8]
        S_.softmax(1, False)
        S_.place(window(q_movs(), 0, 15))
        for g in range(17, NS): SM7_REST.extend(S_.ex[g] + S_.va[g])
        S_.place(window(max_first16(0) + max_finish(), 27, 32))
    else:
        S_.softmax(kt % 2, False)
    print(f"step {kt} model", sum(max(16, 8 + 4 * S_.load(g)) for g in range(NS)), "".join(str(S_.load(g)) for g in range(NS)), file=sys.stderr)
    seq = [label(f"L_seg{kt}" if not first else f"L_first{kt}")]
    for g in range(17 if first and kt == 0 else 0, NS):
        if kt == 7 and g == 17:
            seq += [raw(f"s_cmp_eq_u32 s{sTile}, s{sLast}", "salu", rd=[s(sTile), s(sLast)]), raw("s_cbranch_scc1 L_seg8", "br"), "EXIT"]
        if g == 0: mf = l_mfma((kt - 1) % 2)
        elif g < 17: mf = pv_mfma((kt - 1) % 2, g - 1, kt == 1)
        else: mf = qk_mfma((kt + 1) % 2, g - 17, kt != 7)
        grp = WAITGRP.get(g)
        if grp: mf.also |= set(vr(FR + grp[0], grp[1]))
        seq.append(mf)
        seq += S_.gap(g)
    for x in opt["drop"].split(","):
        if x: seq = [i for i in seq if not (isinstance(i, I) and i.text.startswith(x))]
    return seq + wexit(kt % 2 == 1 and (first or kt > 1))

def flatten(seq, first=False, last=False):
    st, tr = [], []
    done = False
    def add(l, static=True):
        if static: st.extend(l)
        if not done: tr.extend(l)
    for x in seq:
        if x == "EXIT":
            if last: done = True
        elif isinstance(x, Cond):
            add(x.head[:1])
            if x.inline: st.extend(x.ool)
            if first != isinstance(x, Cond2): add(flatten(x.ool)[1], False)
            add(x.head[1:])
        elif isinstance(x, Guard):
            add(x.head + x.body + x.tail)
        elif isinstance(x, Call):
            add(x.head); add({False: kscale, True: vrelay, 2: kvsub, 3: kv2}[x.isv], False)
        else:
            add([x])
    return st, tr

pro = []
A = pro.append
def srd(reg, lo, nb):
    return [salu("s_mov_b32", s(reg), s(lo)), salu("s_and_b32", s(reg + 1), s(lo + 1), 0xffff),
            salu("s_mov_b32", s(reg + 2), nb), salu("s_mov_b32", s(reg + 3), 0x20000)]
A(raw("s_cmp_ge_u32 s2, 256", "salu", rd=["s2"]))
A(raw("s_cbranch_scc1 L_end", "br"))
A(raw("s_load_dwordx4 s[4:7], s[0:1], 0", "smem"))
A(raw("s_load_dwordx4 s[24:27], s[0:1], 16", "smem"))
tA, tB, tC, tD, vLane = SS, SS + 1, SS + 2, SS + 3, SS + 6
A(raw("s_getpc_b64 s[38:39]", "salu", wr=["s38", "s39"]))
A(label("L_pc"))
if opt["cpf"]:
    A(valu("v_lshlrev_b32", v(tC), 5, "v0"))
    A(raw(f"v_min_u32 v{tC}, L_slow-L_pc-32, v{tC}", "valu", rd=[v(tC)], wr=[v(tC)]))
    A(I(f"global_load_dwordx4 v[{SS+8}:{SS+11}], v{tC}, s[38:39]", "vld", rd=[v(tC), "s38", "s39"], wr=vr(SS + 8, 4)))
pro += stamp(98) + stamp(100, True)
A(valu("v_lshrrev_b32", v(tA), 6, "v0"))
A(valu("v_and_b32", v(vLane), 63, "v0"))
A(raw(f"v_readfirstlane_b32 s{sWave}, v{tA}", "rfl", rd=[v(tA)], wr=[s(sWave)]))
A(salu("s_lshr_b32", "s40", "s2", 4))
if opt["map"] == 0:
    A(salu("s_lshl_b32", "s40", "s40", 3))
    A(salu("s_and_b32", "s41", "s2", 7))
else:
    A(salu("s_and_b32", "s41", "s2", 7))
    A(salu("s_lshl_b32", "s41", "s41", 4))
A(salu("s_add_u32", "s40", "s40", "s41"))
A(salu("s_bfe_u32", "s41", "s2", 0x10003))
A(salu("s_lshl_b32", s(sKV), "s40", 16))
if opt["rot"]:
    A(salu("s_lshr_b32", "s42", "s40", opt["rot"] - 1))
    A(salu("s_and_b32", "s42", "s42", 7))
    A(salu("s_lshl_b32", "s42", "s42", 13))
    A(salu("s_add_u32", s(sKV), s(sKV), "s42"))
A(salu("s_lshl1_add_u32", "s40", "s40", "s41"))
A(salu("s_lshl_b32", s(sBase), "s40", 18))
A(salu("s_and_b32", "s40", s(sWave), 3))
A(salu("s_lshl_b32", "s41", "s40", 13))
A(salu("s_add_u32", s(sBase), s(sBase), "s41"))
A(valu("v_lshrrev_b32", v(tA), 3, v(vLane)))
A(valu("v_and_b32", v(tB), 7, v(vLane)))
A(valu("v_lshlrev_b32", v(vG), 10, v(tA)))
A(valu("v_lshl_add_u32", v(vG), v(tB), 4, v(vG)))
A(valu("v_lshrrev_b32", v(tD), 4, v(vLane)))
A(salu("s_lshl_b32", "s42", "s40", 11))
A(valu("v_lshlrev_b32", v(vKd), 8, v(tB)))
A(valu("v_lshl_add_u32", v(vKd), v(tA), 4, v(vKd)))
A(valu("v_add_u32", v(vKd), "s42", v(vKd)))
A(salu("s_lshl_b32", "s41", "s40", 10))
A(salu("s_lshl_b32", "s45", "s40", 11))
A(salu("s_add_u32", "s44", s(sKV), "s45"))
A(salu("s_add_u32", "s45", "s45", LDS_V))
A(valu("v_lshlrev_b32", v(vVd), 4, v(vLane)))
A(raw(f"s_cmp_lt_u32 s{sWave}, 4", "salu", rd=[s(sWave)]))
A(raw("s_waitcnt lgkmcnt(0)", "fullwait"))
if STAMP: A(raw("s_mov_b32 s3, s98")); A(raw("s_mov_b32 s46, s100"))
A(raw("s_cbranch_scc1 L_groupA", "br"))
pro_head = pro
proB0 = srd(sK, 6, KBYTES) + [salu("s_mov_b32", "s43", "s41")] + dma("K0", True) + dma("K1", True) + [raw("s_branch L_groupB", "br")]

def consts():
    c = []
    A = c.append
    c += srd(sO, 26, 0)
    A(salu("s_mov_b32", s(sThr), fbits(2.0 ** 32)))
    A(salu("s_lshl_b32", "s35", s(sWave), 12))
    A(salu("s_add_u32", "s35", "s35", LDS_SCR))
    A(salu("s_mov_b32", s(sScr), "s35"))
    A(valu("v_xor_b32", v(tC), v(tB), v(tD)))
    A(valu("v_lshlrev_b32", v(vQd), 8, v(tA)))
    A(valu("v_lshl_add_u32", v(vQd), v(tC), 4, v(vQd)))
    A(valu("v_xor_b32", v(vQd + 1), 64, v(vQd)))
    A(valu("v_lshlrev_b32", v(tC), 1, v(tA)))
    A(valu("v_and_b32", v(tC), 7, v(tC)))
    A(valu("v_xor_b32", v(tC), v(tC), v(tB)))
    A(valu("v_lshlrev_b32", v(vRw), 9, v(tA)))
    A(valu("v_lshl_add_u32", v(vRw), v(tC), 4, v(vRw)))
    A(valu("v_add_u32", v(vRw), "s35", v(vRw)))
    A(valu("v_and_b32", v(tA), 15, v(vLane)))
    A(valu("v_bfe_u32", v(tC), v(vLane), 1, 3))
    A(valu("v_lshlrev_b32", v(vFr), 7, v(tA)))
    A(valu("v_add_u32", v(vFr), "s35", v(vFr)))
    A(valu("v_lshlrev_b32", v(vGo), 10, v(tD)))
    A(valu("v_lshl_add_u32", v(vGo), v(tA), 4, v(vGo)))
    A(valu("v_and_b32", v(tB), 1, v(tD)))
    A(valu("v_xor_b32", v(tC), v(tC), v(tD)))
    A(valu("v_lshl_add_u32", v(vFr), v(tC), 4, v(vFr)))
    A(valu("v_xor_b32", v(vFr1), 64, v(vFr)))
    for i in range(4): A(valu("v_mov_b32", v(ONES + i), 0x3f803f80))
    A(valu("v_lshrrev_b32", v(tC), 4, v(vLane)))
    A(valu("v_xor_b32", v(tC), v(tC), v(vLane)))
    A(valu("v_and_b32", v(tC), 2, v(tC)))
    A(valu("v_lshrrev_b32", v(tC), 1, v(tC)))
    A(valu("v_add_u32", v(tC), -1, v(tC)))
    for i in range(4): A(valu("v_and_b32", v(ASP + i), 0x40804080, v(tC)))
    A(valu("v_and_b32", v(tC), 1, v(vLane)))
    A(valu("v_mul_u32_u24", v(tC), 0xaaaa, v(tC)))
    A(valu("v_add_u32", v(vIdx), 0x4444, v(tC)))
    A(valu("v_lshrrev_b32", v(tC), 3, v(tA)))
    A(valu("v_lshlrev_b32", v(vK), 10, v(tC)))
    A(valu("v_and_b32", v(tC), 7, v(vLane)))
    A(valu("v_lshl_add_u32", v(vK), v(tC), 4, v(vK)))
    A(valu("v_lshl_add_u32", v(vK), v(tD), 7, v(vK)))
    A(valu("v_bfe_u32", v(tC), v(vLane), 2, 2))
    A(valu("v_mul_u32_u24", v(vV), 288, v(tC)))
    A(valu("v_lshl_add_u32", v(vV), v(tB), 7, v(vV)))
    A(valu("v_lshrrev_b32", v(tC), 5, v(vLane)))
    A(valu("v_lshl_add_u32", v(vV), v(tC), 11, v(vV)))
    A(valu("v_and_b32", v(tC), 3, v(vLane)))
    A(valu("v_lshl_add_u32", v(vV), v(tC), 3, v(vV)))
    A(valu("v_add_u32", v(vV), LDS_V, v(vV)))
    for t in range(1, 4):
        A(valu("v_xor_b32", v(vV + t), t * 32, v(vV)))
    A(salu("s_add_u32", s(sQoff), s(sBase), TSTRIDE))
    A(salu("s_mov_b32", s(sOoff), s(sBase)))
    A(salu("s_mov_b32", s(sOoff2), s(sBase)))
    A(salu("s_mov_b32", s(sTile), 0))
    A(salu("s_mov_b32", s(sBad), 0))
    return c

proA = [label("L_groupA")] + srd(sQ, 4, QBYTES)
if opt["qa"]:
    proA += [valu("v_xor_b32", v(tC), v(tB), v(tD)), valu("v_lshlrev_b32", v(vQd), 8, v(tA)),
             valu("v_lshl_add_u32", v(vQd), v(tC), 4, v(vQd)), valu("v_xor_b32", v(vQd + 1), 64, v(vQd)),
             salu("s_lshl_b32", s(sScr), s(sWave), 12), salu("s_add_u32", s(sScr), s(sScr), LDS_SCR)]
    for j in range(4):
        for half in range(2):
            proA += [salu("s_add_u32", "m0", s(sScr), 1024 * j + 16384 * half), salu("s_add_u32", "s42", s(sBase), 2048 * j + 128 * half),
                     buf_load_lds(vQd + (j & 1), sQ, "s42", 0, QF, tag="Q0")]
else:
    proA += q_loads(T, s(sBase))
if AUP: proA += srd(sK, 6, KBYTES) + srd(sV, 24, KBYTES) + flat([dma(t) for t in AUP])
proA += stamp(56)
proA += [salu("s_mov_b32", s(sLast), NA - 1), salu("s_mov_b32", s(sCut), (99 if opt["lbm"] else 0) if LB else NA - 2),
         raw("s_mov_b64 vcc, -1", "salu", wr=["vcc"])]
proA += consts()
if opt["qa"]:
    proA += [wait_vm("Q0")] + flat(q_reads(0))
    proA += [ds_read(Qreg(qb, 2 + x), 4, (vFr, vFr1)[x], 2048 * qb + 16384) for x in range(2) for qb in range(2)]
    proA += [raw("s_waitcnt lgkmcnt(0)", "fullwait")]
else:
    proA += flat(q_writes(T, 0) + q_reads(0) + q_writes(T, 1) + q_reads(1))
def first_h0(): return flat([q_dma(0, j, vr(QC, 32) if j == 0 else ())[0] + [q_dma(0, j, vr(QC, 32) if j == 0 else ())[1]] for j in range(4)])
if opt["xq1"]: proA += [salu("s_mov_b32", s(sQ + 2), 0)]
if opt["q1"]: proA += srd(sK, 4, QBYTES) + [salu("s_mov_b32", s(sQ + 2), 0)]
if opt["xdelay"]: proA += [raw(f"s_sleep {opt['xdelay']}")]
proA += [raw("s_barrier", "bar")]
proC = [label("L_start")] + stamp(62, STAMP == 2)
for kb in range(2):
    for ds_ in range(4): proC += kfrag(0, kb, ds_)
proC += (first_h0() if opt['h0site'] < 0 and not opt['q1'] else [Cond2(first_h0())]) + lzero() + [valu("v_mov_b32", v(AT + i), 0) for i in range(1, 4)]
mx = max_first16(0) + max_finish()
for m in range(16):
    proC.append(qk_mfma(0, m, False))
    if opt["k0"] and m == 4: proC.append(Cond([raw("s_barrier", "bar")]))
    if opt["peel"] and (m & 7) >= 4: proC += kfrag(1, m >> 3, m & 3)
    if m >= 10: proC += mx[(m - 10) * 2:(m - 10) * 2 + 2]
proC += mx[12:]
proB = [label("L_groupB")] + ([raw("s_setprio 3")] if opt["bprio"] else [])
A = proB.append
A(salu("s_add_u32", s(sBase), s(sBase), 5 * TSTRIDE if LB else NA * TSTRIDE))
if opt["up"] >= 3: proB += dma("K2", True)
A(salu("s_mov_b32", "s35", "s45"))
proB += srd(sV, 24, KBYTES)
if opt["up"] >= 4: proB += dma("V0", True)
for t in ["K3", "V1", "K4", "V2", "K5", "V3", "K6", "V4", "K7", "V5", "V6", "V7"][:max(0, opt["up"] - 4)]: proB += dma(t, True)
proB += stamp(56)
proB += srd(sQ, 4, QBYTES)
A(salu("s_mov_b32", "s6", "s35")); A(salu("s_mov_b32", "s7", "s43")); A(salu("s_mov_b32", "s28", "s39"))
A(raw("s_mov_b64 vcc, 0", "salu", wr=["vcc"]))
proB += consts()
if opt["warm"]:
    proB += [salu("s_mov_b32", s(sQ + 2), 0), salu("s_mov_b32", s(sLast), 9), raw("s_mov_b64 exec, 0", "salu", wr=["exec"])]
    for k in range(4):
        proB += [raw(f"s_cmp_eq_u32 s40, {k}", "salu", rd=["s40"]), raw(f"s_cbranch_scc1 " + (f"L_seg{2*k}" if k else "L_first0"), "br")]
    proB += [label("L_warm_ret"), raw("s_mov_b64 exec, -1", "salu", wr=["exec"]), raw(f"s_setprio {3 if opt['bprio'] else 0}", "salu"),
             salu("s_mov_b32", s(sQ + 2), QBYTES), salu("s_mov_b32", s(sO + 2), 0),
             salu("s_add_u32", s(sQoff), s(sBase), TSTRIDE), salu("s_mov_b32", s(sOoff), s(sBase)), salu("s_mov_b32", s(sOoff2), s(sBase))]
A(raw(f"v_mbcnt_lo_u32_b32 v{vLane}, -1, 0", "valu", wr=[v(vLane)]))
A(raw(f"v_mbcnt_hi_u32_b32 v{vLane}, -1, v{vLane}", "valu", rd=[v(vLane)], wr=[v(vLane)]))
A(valu("v_lshrrev_b32", v(tA), 3, v(vLane)))
A(valu("v_and_b32", v(tB), 7, v(vLane)))
A(valu("v_lshrrev_b32", v(tD), 4, v(vLane)))
A(salu("s_mov_b32", "s35", "s6")); A(salu("s_mov_b32", "s43", "s7"))
CS = math.log2(math.e) / math.sqrt(128.0)
def bf16(x):
    u = fbits(x); return (u + 0x7fff + ((u >> 16) & 1)) >> 16
C_HI = bf16(CS); C_LO = bf16(CS - struct.unpack("<f", struct.pack("<I", C_HI << 16))[0])
A(valu("v_lshl_add_u32", v(vKs), v(tB), 4, "s43"))
A(valu("v_and_b32", v(tC), 1, v(tA)))
A(valu("v_lshl_add_u32", v(vKs), v(tC), 8, v(vKs)))
A(valu("v_lshrrev_b32", v(vX), 5, v(vLane)))
A(valu("v_lshl_add_u32", v(vKw), v(vX), 7, v(vKs)))
A(valu("v_and_b32", v(CM), 1, v(tD)))
A(valu("v_lshl_add_u32", v(vKw), v(CM), 3, v(vKw)))
A(valu("v_lshl_add_u32", v(vKs), v(CM), 7, v(vKs)))
A(valu("v_xor_b32", v(tC), v(tC), v(CM)))
A(valu("v_add_u32", v(tC), -1, v(tC)))
A(valu("v_mul_u32_u24", v(vX), (C_HI ^ C_LO), v(vX)))
A(valu("v_xor_b32", v(vX), C_HI, v(vX)))
A(valu("v_and_b32", v(vX), v(vX), v(tC)))
A(valu("v_and_b32", v(tC), 1, v(vLane)))
A(valu("v_lshlrev_b32", v(tC), 4, v(tC)))
A(valu("v_lshlrev_b32", v(vX), v(tC), v(vX)))
A(valu("v_bfe_u32", v(tC), v(vLane), 1, 2))
for i in range(4):
    A(raw(f"v_cmp_eq_u32_e64 s[{sChk}:{sChk+1}], {i}, v{tC}", "valu", rd=[v(tC)], wr=sr(sChk, 2)))
    A(raw(f"v_cndmask_b32_e64 v{CM+i}, 0, v{vX}, s[{sChk}:{sChk+1}]", "valu", rd=[v(vX)] + sr(sChk, 2), wr=[v(CM + i)]))
A(raw(f"s_add_u32 s{sSub}, s38, L_kscale-L_pc", "salu", rd=["s38"], wr=[s(sSub)]))
A(raw(f"s_addc_u32 s{sSub+1}, s28, 0", "salu", rd=["s28"], wr=[s(sSub + 1)]))
A(raw(f"s_add_u32 s{sSubV}, s38, L_vrelay-L_pc", "salu", rd=["s38"], wr=[s(sSubV)]))
A(raw(f"s_addc_u32 s{sSubV+1}, s28, 0", "salu", rd=["s28"], wr=[s(sSubV + 1)]))
A(raw(f"s_add_u32 s{sSubKV}, s38, L_kv-L_pc", "salu", rd=["s38"], wr=[s(sSubKV)]))
A(raw(f"s_addc_u32 s{sSubKV+1}, s28, 0", "salu", rd=["s28"], wr=[s(sSubKV + 1)]))
A(valu("v_and_b32", v(vX), 3, v(vLane)))
A(valu("v_lshl_add_u32", v(vVr), v(vX), 6, "s35"))
A(valu("v_bfe_u32", v(tC), v(vLane), 2, 2))
A(valu("v_lshl_add_u32", v(vVr), v(tC), 4, v(vVr)))
A(valu("v_lshl_add_u32", v(vVw), v(tC), 3, "s35"))
A(valu("v_and_b32", v(tC), 1, v(tD)))
A(valu("v_lshl_add_u32", v(vVr), v(tC), 3, v(vVr)))
A(valu("v_lshl_add_u32", v(vVw), v(tC), 10, v(vVw)))
A(valu("v_lshrrev_b32", v(tC), 5, v(vLane)))
A(valu("v_lshl_add_u32", v(vVr), v(tC), 8, v(vVr)))
A(valu("v_lshl_add_u32", v(vVw), v(tC), 8, v(vVw)))
A(valu("v_xor_b32", v(tC), v(tC), v(vX)))
A(valu("v_lshl_add_u32", v(vVw), v(tC), 5, v(vVw)))
A(valu("v_xor_b32", v(vVw + 1), 64, v(vVw)))
A(valu("v_add_u32", v(vVw + 1), 512, v(vVw + 1)))
proB += [salu("s_mov_b32", s(sLast), NB - 1), salu("s_mov_b32", s(sCut), (99 if opt["lbm"] else 0) if LB else NB - 2)]
proB += [raw(f"s_add_u32 s26, s{sSub}, L_kv2-L_kscale", "salu", rd=[s(sSub)], wr=["s26"]), raw(f"s_addc_u32 s27, s{sSub+1}, 0", "salu")]
_bn = [0]
def lg0():
    return raw("s_waitcnt lgkmcnt(0)", "fullwait")
def bar():
    if STAMP and STAMP != 4 and not LB:
        _bn[0] += 1
        return raw(f"s_memtime s[60:61]\n    s_waitcnt lgkmcnt(0)\n    s_mov_b32 s{88 + _bn[0]}, s60\n    s_barrier", "bar")
    return raw("s_barrier", "bar")
ORD = ["K0", "K1", "K2", "V0", "K3", "V1", "K4", "V2", "K5", "V3", "K6", "V4", "K7", "V5", "V6", "V7"]
UP, MID = opt["up"], opt["mid"]
if opt["k0"]: proB += [wait_vm("K0"), Call(), lg0(), bar(), wait_vm("K1"), Call(), lg0(), bar()]
else:
    pre = [dma(t) for t in ORD[UP:UP + opt["pre"]]]; UP += opt["pre"]
    proB += [wait_vm("K0")] + flat(pre[:1]) + [Call(), wait_vm("K1")] + flat(pre[1:2]) + [Call()] + flat(pre[2:]) + [lg0(), bar()]
q0 = q_loads(T, s(sBase))
def paced(l):
    if not opt["lim"]: return l
    out = []
    for i in l:
        if i.kind in ("dma", "vld"): out.append(raw(f"s_waitcnt vmcnt({opt['lim'] - 1})", "salu"))
        out.append(i)
    return out
q0 = paced(q0)
units = [paced(dma(t)) for t in ORD[UP:] if t not in AUP]
proB += flat(units[:MID]); units = units[MID:]
if opt["q0at"] == -1: proB += q0
kdone = 1; vdone = -1
for n, site in enumerate(SITES):
    nxt = SITES[n + 1] if n + 1 < len(SITES) else 8
    ks = list(range(kdone + 1, min(nxt + 1, 7) + 1)); vs = list(range(vdone + 1, nxt))
    if any(f"K{k}" in AUP for k in ks) or any(f"V{k}" in AUP for k in vs): assert site > opt["aconf"]
    while ks or vs:
        if len(ks) >= 2 and len(vs) >= 2:
            t = [f"K{ks.pop(0)}", f"K{ks.pop(0)}", f"V{vs.pop(0)}", f"V{vs.pop(0)}"]
            kdone = int(t[1][1]); vdone = int(t[3][1])
            proB += [wait_vm(*t), Call(3)]
        elif ks and vs:
            kdone = ks.pop(0); vdone = vs.pop(0)
            proB += [wait_vm(f"K{kdone}", f"V{vdone}"), Call(2)]
        elif ks:
            kdone = ks.pop(0); proB += [wait_vm(f"K{kdone}"), Call()]
        else:
            vdone = vs.pop(0); proB += [wait_vm(f"V{vdone}"), Call(True)]
    proB += [lg0(), bar()]
    m = opt["per"]
    proB += flat(units[:m]); units = units[m:]
    if site == opt["q0at"]:
        assert not units
        proB += q0
proB += flat(q_writes(T, 0) + q_reads(0) + q_writes(T, 1) + q_reads(1))
proB += [raw("s_setprio 0"), raw("s_branch " + ("L_end" if LB == 1 else "L_start"), "br")]
proB_st, proB_tr = flatten(proB)

peel = []
if opt["peel"]:
    peel = make_step(0, True) + make_step(1, True) + [raw("s_branch L_seg2", "br")]
steps = []
for kt in range(8):
    if kt == 2: n2 = len(steps)
    steps += make_step(kt)
steps += [salu("s_add_u32", s(sTile), s(sTile), 1)]
steps += [raw("s_branch L_seg0", "br")]
body_st, body_tr0 = flatten(steps, first=True)
body_tr = flatten(steps)[1]
body_trl = flatten(steps, last=True)[1]

import copy
tail = [label("L_seg8")]
tail += stamp(60, STAMP == 2)
for dt in range(8): tail += vfrag(7, dt)
tail += [copy.copy(x) for x in SM7_REST]
tail += [l_mfma(1)]
pv = [pv_mfma(1, m, False) for m in range(16)]
def pack_row(qb, r):
    o = []
    for j in range(4):
        a, b = Oreg(2 * j, qb) + r, Oreg(2 * j + 1, qb) + r
        o += [valu("v_mul_f32", v(a), v(a), v(LI + 4 * qb + r)), valu("v_mul_f32", v(b), v(b), v(LI + 4 * qb + r))]
    for j in range(4):
        o.append(valu("v_cvt_pk_bf16_f32", v(T + 16 * qb + 4 * r + j), v(Oreg(2 * j, qb) + r), v(Oreg(2 * j + 1, qb) + r)))
    return o + [o_stores(fl=opt['oft'])[4 * qb + r]]
pv0, pv1 = pv[0::2], pv[1::2]
h, s0, m0, s1, m1 = lred()
tail += pv0[:4] + h[:2] + [pv0[4]] + h[2:5] + [pv0[5]] + h[5:] + s0[:2] + [pv0[6]] + s0[2:] + [pv0[7]] + m0 + s1[:2] + [pv1[0]] + s1[2:] + [pv1[1]] + m1
p0 = flat([pack_row(0, r) for r in range(4)])
k = 0
for m in range(2, 8):
    tail += [pv1[m]] + p0[k:k + 4]; k += 4
tail += p0[k:] + flat([pack_row(1, r) for r in range(4)]) + bad_update()[0]
if STAMP:
    tail += [raw("s_waitcnt vmcnt(0) lgkmcnt(0)", "fullwait")] + stamp(4) + stamp(58, True)
    tail += [raw("s_load_dwordx2 s[6:7], s[0:1], 40", "smem"), raw("s_waitcnt lgkmcnt(0)", "fullwait"),
             raw("s_mov_b32 s96, s62"),
             raw("s_mov_b32 s8, s6"), raw("s_and_b32 s9, s7, 0xffff"), raw("s_mov_b32 s10, 0x10000000"), raw("s_mov_b32 s11, 0x20000"),
             raw(f"s_lshl_b32 s35, s2, 3"), raw(f"s_add_u32 s35, s35, s{sWave}"), raw("s_mul_i32 s35, s35, 192"),
             raw("s_getreg_b32 s97, hwreg(HW_REG_HW_ID)"), raw("v_mov_b32 v32, 0", "valu")]
    regs = [3, 46, 56, 56, 60, 60, 4, 58] + list(range(64, 102))
    for i, r in enumerate(regs):
        if STAMP == 4 and i not in (1, 7): continue
        tail += [raw(f"v_mov_b32 v33, s{r}", "valu"), raw(f"buffer_store_dword v33, v32, s[8:11], s35 offen offset:{4*i}", "vst"), raw("s_nop 1")]
tail += [salu("s_lshl_b32", "s41", 1, s(sLast)), salu("s_lshl_b32", "s40", "s41", 1), salu("s_sub_u32", "s40", "s40", 1),
         salu("s_and_b32", s(sBad), s(sBad), "s40"), raw("s_cbranch_scc1 " + ("L_end" if BROKEN or STAMP else "L_slow"), "br"),
         label("L_end"), raw("s_endpgm", "br")]
ool = []
for c in Cond.blocks: ool += flatten(c.ool)[0]
ool += kscale + vrelay + kvsub + kv2

vD, vD1, vKa, vVa = T, T + 1, T + 2, T + 4
slow_pre = [label("L_slow"), raw("s_waitcnt vmcnt(0) lgkmcnt(0)", "fullwait"),
            salu("s_mov_b32", s(sQ + 2), QBYTES),
            raw(f"v_mbcnt_lo_u32_b32 v{vD}, -1, 0", "valu", wr=[v(vD)]),
            raw(f"v_mbcnt_hi_u32_b32 v{vD}, -1, v{vD}", "valu", rd=[v(vD)], wr=[v(vD)]),
            valu("v_lshrrev_b32", v(vX), 4, v(vD)),
            valu("v_and_b32", v(vD), 15, v(vD)),
            valu("v_lshlrev_b32", v(vD), 8, v(vD)),
            valu("v_lshl_add_u32", v(vD), v(vX), 4, v(vD)),
            salu("s_mov_b32", "s40", s(sBase))]
st_head = [label("L_slow_tile"),
           raw(f"s_and_b32 s42, s{sBad}, s41", "salu", rd=[s(sBad), "s41"], wr=["s42"]),
           raw("s_cbranch_scc0 L_slow_next", "br")]
st_a = [salu("s_add_u32", "s39", "s40", 4096)]
st_a += [buf_load(Qreg(qb, ds_), 4, vD, sQ, ("s40", "s39")[qb], ds_ * 64) for qb in range(2) for ds_ in range(4)]
st_a += [valu("v_mov_b32", v(vMa), 0xff800000), valu("v_mov_b32", v(vMb), 0xff800000),
         valu("v_mov_b32", v(vKa), v(vK)), salu("s_mov_b32", "s35", 0)]
def slow_qk(shifted):
    o = []
    for kb in range(2):
        for ds_ in range(4): o += kfrag(0, kb, ds_, vKa)
    return o + [qk_mfma(0, m, shifted) for m in range(16)]
def slow_loop(lbl):
    return [salu("s_add_u32", "s35", "s35", 1), raw("s_cmp_lt_u32 s35, 8", "salu", rd=["s35"]), raw(f"s_cbranch_scc1 {lbl}", "br")]
p1 = [label("L_slow_p1")] + slow_qk(False)
for i in range(0, 8, 2):
    for qb in range(2):
        p1.append(valu("v_max3_f32", v((vMa, vMb)[qb]), v((vMa, vMb)[qb]), v(Sreg(0, i >> 2, qb) + (i & 3)), v(Sreg(0, i >> 2, qb) + (i & 3) + 1)))
p1 += [valu("v_add_u32", v(vKa), 8192, v(vKa))] + slow_loop("L_slow_p1")
st_b = max_finish() + lzero() + [valu("v_mov_b32", v(vKa), v(vK)),
                       salu("s_mov_b32", "s35", 0)]
st_b += [valu("v_mov_b32", v(vVa + t), v(vV + t)) for t in range(4)]
st_b += [valu("v_mov_b32", v(O + i), 0) for i in range(64)]
p2 = [label("L_slow_p2")] + slow_qk(True)
for dt in range(8): p2 += vfrag(0, dt, vVa)
p2 += softmax_stream(0, False) + [l_mfma(0)] + [pv_mfma(0, m, False) for m in range(16)]
p2 += [valu("v_add_u32", v(vKa), 8192, v(vKa))] + [valu("v_add_u32", v(vVa + t), 8192, v(vVa + t)) for t in range(4)]
p2 += slow_loop("L_slow_p2")
st_c = flat(lred(check=False)) + pack_stream(0, 8, T + 8 if False else FR) + o_stores(FR, ("s40", "s39"))
st_next = [label("L_slow_next"), salu("s_add_u32", "s40", "s40", TSTRIDE), salu("s_lshr_b32", "s41", "s41", 1),
           raw("s_cbranch_scc1 L_slow_tile", "br"), raw("s_endpgm", "br")]
slow = slow_pre + st_head + st_a + p1 + st_b + p2 + st_c + st_next

one = st_head + st_a + p1 + p1 + p1 + st_b + p2 + p2 + p2 + st_c + st_next
if opt["peel"]:
    t0A = flatten(peel + steps[n2:], first=True)[1]; t0B = flatten(peel + steps[n2:])[1]
else:
    t0A = body_tr0; t0B = body_tr
t0A = [I("dummy", "vst") if i.kind == "vst" else i for i in t0A]
trA = pro_head + proA + flatten(proC, first=True)[1] + t0A + body_tr + body_tr + body_trl + tail + slow_pre + one + one
trB = pro_head + proB0 + proB_tr + flatten(proC)[1] + t0B + body_tr + body_trl + tail
for _ in range(2):
    analyze_waits(trA); analyze_waits(trB)
analyze_hazards(trA); analyze_hazards(trB); analyze_hazards(trA)
prog = pro_head + proB0 + proA + flatten(proC)[0] + flatten(peel)[0] + body_st + tail + ool + proB_st + slow

hdr = """; GQA attention, B32 Hq32 Hkv4 Sq256 Sk256 D128 bf16.  Generated by my own generator script (gen31.py).
; One persistent 512-thread workgroup per CU: K (pre-scaled by log2(e)/sqrt(D)) and V of one kv head live in LDS,
; @launch grid=(256,1,1) block=(512,1,1) lds=163840
.amdgcn_target "amdgcn-amd-amdhsa--gfx950"
.text
.globl standalone__gqa_softmax__near_ridge_kernel
.p2align 8
.type standalone__gqa_softmax__near_ridge_kernel,@function
standalone__gqa_softmax__near_ridge_kernel:
"""
ftr = """
.section .rodata,"a"
.p2align 6
.amdhsa_kernel standalone__gqa_softmax__near_ridge_kernel
  .amdhsa_next_free_vgpr 256
  .amdhsa_next_free_sgpr 102
  .amdhsa_accum_offset 256
  .amdhsa_group_segment_fixed_size 0
  .amdhsa_kernarg_size 48
  .amdhsa_user_sgpr_count 2
  .amdhsa_user_sgpr_kernarg_segment_ptr 1
  .amdhsa_system_sgpr_workgroup_id_x 1
.end_amdhsa_kernel
"""
body = emit(prog)
if opt['al']: body = align_pass(body, opt['al'])
print(hdr + body + ftr)
```
